```python
import torch

def _softmax(x, axis=-1):
    return torch.softmax(x, dim=axis)
def _gelu(x):
    return torch.nn.functional.gelu(x, approximate="tanh")
def _silu(x):
    return torch.nn.functional.silu(x)
def _sigmoid(x):
    return torch.sigmoid(x)
def _layernorm(x, axis=-1, eps=1e-5):
    m = x.mean(dim=axis, keepdim=True)
    v = x.var(dim=axis, keepdim=True, unbiased=False)
    return (x - m) / torch.sqrt(v + eps)
def _scatter_add(tgt, idx, src, axis=0):
    return tgt.clone().index_add_(axis, idx, src)
def _segment_sum(src, seg, n):
    out = torch.zeros((n,) + src.shape[1:], dtype=src.dtype)
    return out.index_add_(0, seg, src)
def _pad(x, pw):
    flat = tuple(v for pair in reversed(pw) for v in pair)
    return torch.nn.functional.pad(x, flat)

kernel_name = 'interleave_layers__gqa_block_cached__dense_activation_silu__decode'

def setup_inputs():

    _w = (lambda a: (lambda t: t.to(torch.bfloat16) if t.is_floating_point() else t)(torch.as_tensor(a)))
    def _A_setup():
        B, Sq, D = 8, 1, 512
        Hq, Hkv, Sk, Dh = 32, 32, 4096, 128
        assert Hq % Hkv == 0, (Hq, Hkv)
        return {
            "x": _w((lambda *s: torch.randn(*s, dtype=torch.bfloat16) * 0.1)(B, Sq, D)),
            "k_cache": _w((lambda *s: torch.randn(*s, dtype=torch.bfloat16) * 0.8)(B, Hkv, Sk, Dh)),
            "v_cache": _w((lambda *s: torch.randn(*s, dtype=torch.bfloat16) * 1.6)(B, Hkv, Sk, Dh)),
            "wq": _w((lambda *s: torch.randn(*s, dtype=torch.bfloat16) * 0.8)(D, Hq * Dh) * (D ** -0.5)),
            "wo": _w((lambda *s: torch.randn(*s, dtype=torch.bfloat16) * 1.6)(Hq * Dh, D) * ((Hq * Dh) ** -0.5)),
        }
    _A_in = _A_setup()

    def _B_setup():
        B, S, D, F = 8, 1, 512, 1376
        return {
            "x": _w((lambda *s: torch.randn(*s, dtype=torch.bfloat16) * 0.1)(B, S, D)),
            "w1": _w((lambda *s: torch.randn(*s, dtype=torch.bfloat16) * 0.4)(D, F) * (D ** -0.5)),
            "w2": _w((lambda *s: torch.randn(*s, dtype=torch.bfloat16) * 0.4)(F, D) * (F ** -0.5)),
        }
    _B_in = _B_setup()

    return {
        "A_x": _A_in["x"],
        "A_k_cache": _A_in["k_cache"],
        "A_v_cache": _A_in["v_cache"],
        "A_wq": _A_in["wq"],
        "A_wo": _A_in["wo"],
        "B_x": _B_in["x"],
        "B_w1": _B_in["w1"],
        "B_w2": _B_in["w2"],
    }

def reference(A_x, A_k_cache, A_v_cache, A_wq, A_wo, B_x, B_w1, B_w2):
    def _A_ref(x, k_cache, v_cache, wq, wo):
        B, Sq, D = x.shape
        Hq, Dh = 32, 128
        Hkv = k_cache.shape[1]
        rep = Hq // Hkv
        q = (lambda x, *d: x.permute(*d))((x @ wq).reshape(B, Sq, Hq, Dh), 0, 2, 1, 3)
        k = (lambda x, n, axis: torch.repeat_interleave(x, n, dim=axis))(k_cache, rep, axis=1)
        v = (lambda x, n, axis: torch.repeat_interleave(x, n, dim=axis))(v_cache, rep, axis=1)
        scores = torch.einsum("bhqd,bhkd->bhqk", q, k) * (Dh ** -0.5)
        p = _softmax(scores, axis=-1)
        o = torch.einsum("bhqk,bhkd->bhqd", p, v)
        return (lambda x, *d: x.permute(*d))(o, 0, 2, 1, 3).reshape(B, Sq, Hq * Dh) @ wo

    def _B_ref(x, w1, w2):
        h = torch.einsum("bsd,df->bsf", x, w1)
        h = _silu(h)
        out = torch.einsum("bsf,fd->bsd", h, w2)
        return out

    x = A_x
    x = x + _A_ref(_layernorm(x, axis=-1), A_k_cache, A_v_cache, A_wq, A_wo)
    x = x + _B_ref(_layernorm(x, axis=-1), B_w1, B_w2)
    x = x + _A_ref(_layernorm(x, axis=-1), A_k_cache, A_v_cache, A_wq, A_wo)
    x = x + _B_ref(_layernorm(x, axis=-1), B_w1, B_w2)
    return x
```

```python
import re

TRANS = ('v_exp_f32', 'v_log_f32', 'v_rcp_f32', 'v_rsq_f32', 'v_sqrt_f32', 'v_sin_f32', 'v_cos_f32')

def regs_of(tok):
    tok = tok.strip()
    neg = tok.lstrip('-')
    m = re.fullmatch(r'abs\((.*)\)', neg)
    if m: neg = m.group(1)
    m = re.fullmatch(r'([vs])(\d+)', neg)
    if m: return [(m.group(1), int(m.group(2)))]
    m = re.fullmatch(r'([vs])\[(\d+):(\d+)\]', neg)
    if m: return [(m.group(1), i) for i in range(int(m.group(2)), int(m.group(3)) + 1)]
    if neg == 'vcc': return [('s', 106), ('s', 107)]
    if neg == 'exec': return [('s', 126), ('s', 127)]
    if neg == 'm0': return [('s', 124)]
    return []

class Asm:
    def __init__(self):
        self.lines = []
        self.slot = 0
        self.vw = {}
        self.sw = {}
        self.m0w = -100
        self.stw = {}
        self.nlabel = 0
        self.nnops = 0

    def raw(self, s):
        self.lines.append(s)

    def comment(self, s):
        self.lines.append('    ; ' + s)

    def newlabel(self, base='L'):
        self.nlabel += 1
        return f'{base}_{self.nlabel}'

    def label(self, name):
        self.lines.append(f'{name}:')
        self._nop(4)
        self.vw.clear(); self.sw.clear(); self.stw.clear(); self.m0w = -100

    def _nop(self, n):
        while n > 0:
            k = min(n, 16)
            self.lines.append(f'    s_nop {k-1}')
            self.slot += k
            self.nnops += 1
            n -= k

    def __call__(self, text):
        text = text.strip()
        sp = text.split(None, 1)
        op = sp[0]
        rest = sp[1] if len(sp) > 1 else ''
        ops = []
        depth = 0; cur = ''
        for ch in rest:
            if ch in '[(': depth += 1
            if ch in '])': depth -= 1
            if ch == ',' and depth == 0:
                ops.append(cur.strip()); cur = ''
            else:
                cur += ch
        if cur.strip(): ops.append(cur.strip())
        mods = ''
        if ops:
            last = ops[-1].split(None, 1)
            ops[-1] = last[0]
            mods = last[1] if len(last) > 1 else ''
        base = re.sub(r'_(e32|e64|dpp|sdwa)$', '', op)
        is_valu = op.startswith('v_')
        is_dpp = op.endswith('_dpp') or any(k in mods for k in ('row_', 'quad_perm', 'wave_'))
        is_vmem = op.startswith(('buffer_', 'global_', 'flat_'))
        is_ds = op.startswith('ds_')
        need = 0
        wr_v = []; wr_s = []; rd = []
        if is_valu:
            if base.startswith('v_cmp'):
                wr_s = regs_of(ops[0]); rd = sum((regs_of(o) for o in ops[1:]), [])
            elif base in ('v_readlane_b32', 'v_readfirstlane_b32'):
                wr_s = regs_of(ops[0]); rd = sum((regs_of(o) for o in ops[1:]), [])
            elif base.startswith('v_permlane') and base.endswith('swap_b32'):
                wr_v = regs_of(ops[0]) + regs_of(ops[1]); rd = list(wr_v)
            else:
                wr_v = regs_of(ops[0])
                srcs = ops[1:]
                if base in ('v_add_co_u32', 'v_addc_co_u32', 'v_sub_co_u32'):
                    wr_s = regs_of(ops[1]); srcs = ops[2:]
                rd = sum((regs_of(o) for o in srcs), [])
                if base in ('v_dot2c_f32_bf16', 'v_fmac_f32'):
                    rd += wr_v
                if base == 'v_cndmask_b32' and len(ops) == 3:
                    rd += [('s', 106), ('s', 107)]
            is_trans = base in TRANS
            is_dot = base.startswith('v_dot')
            for i, r in enumerate(rd):
                if r[0] == 'v' and r in self.vw:
                    ws, kind, wop = self.vw[r]
                    d = self.slot - ws - 1
                    req = 0
                    if kind == 'dot':
                        acc_ok = is_dot and wop == base and (r in wr_v) and (r not in sum((regs_of(o) for o in ops[1:3]), []))
                        if base == 'v_dot2_f32_bf16' and wop == base and r in regs_of(ops[3]) and r not in regs_of(ops[1]) + regs_of(ops[2]):
                            acc_ok = True
                        if not acc_ok: req = max(req, 3)
                    if kind == 'trans' and not is_trans: req = max(req, 1)
                    if is_dpp and r in regs_of(ops[1]): req = max(req, 2)
                    if base in ('v_readlane_b32', 'v_readfirstlane_b32'): req = max(req, 1)
                    if base.startswith('v_permlane'): req = max(req, 2)
                    need = max(need, req - d)
                if r[0] == 's' and r in self.sw:
                    d = self.slot - self.sw[r] - 1
                    req = 4 if base in ('v_readlane_b32', 'v_writelane_b32') else 2
                    need = max(need, req - d)
            for r in wr_v:
                if r in self.vw and self.vw[r][1] == 'dot' and not (is_dot and self.vw[r][2] == base):
                    need = max(need, 3 - (self.slot - self.vw[r][0] - 1))
                if r in self.stw:
                    need = max(need, 2 - (self.slot - self.stw[r] - 1))
        elif is_vmem or is_ds:
            allr = sum((regs_of(o) for o in ops), [])
            for r in allr:
                if r[0] == 's' and r in self.sw:
                    need = max(need, 5 - (self.slot - self.sw[r] - 1))
                if r[0] == 'v' and r in self.vw and self.vw[r][1] == 'dot':
                    need = max(need, 3 - (self.slot - self.vw[r][0] - 1))
            if 'lds' in mods.split() or '_lds_' in op:
                need = max(need, 1 - (self.slot - self.m0w - 1))
        if need > 0:
            self._nop(need)
        self.lines.append('    ' + text)
        if is_valu:
            kind = 'dot' if base.startswith('v_dot') else ('trans' if base in TRANS else 'valu')
            for r in wr_v: self.vw[r] = (self.slot, kind, base)
            for r in wr_s: self.sw[r] = self.slot
        else:
            if (is_vmem or is_ds):
                if ('load' in op or 'read' in op) and ops and 'lds' not in mods.split() and '_lds_' not in op:
                    for r in regs_of(ops[0]): self.vw.pop(r, None)
                if 'store' in op and ('x4' in op or 'x3' in op):
                    dat = ops[0] if op.startswith('buffer_') else ops[1]
                    for r in regs_of(dat): self.stw[r] = self.slot
            if op.startswith('s_') and ops:
                for r in regs_of(ops[0]):
                    self.sw.pop(r, None)
                    if r == ('s', 124): self.m0w = self.slot
            if op == 's_nop':
                self.slot += int(ops[0])
        self.slot += 1

    def text(self):
        return '\n'.join(self.lines) + '\n'
```

```python
import sys, os
from asmdsl import Asm
PROFILE = int(os.environ.get("PROFILE", "0"))
WS_PROF = 0x2000000

NAME = "interleave_layers__gqa_block_cached__dense_activation_silu__decode"
LOG2E = 0x3fb8aa3b
SCALE = 0x3db504f3
EPS = 0x3727c5ac
INV512 = 0x3b000000

WS_Q1 = 0x0
WS_AREA = 0x100000
AREA = 0x80000
O_REC, REC_STRIDE = 0x0, 576
O_YP = 0x12000
O_X1 = 0x22000
O_X2 = 0x32000
O_Q2 = 0x42000
O_ZP = 0x44000
ZPS = 1856
NZP = 115
NFILL = 10

L_V = 0
L_WO = 57344
L_WQ = 90112
L_W1 = 122880
L_W2 = 135168
L_SC = 147456
L_EP0 = L_SC
L_EP1 = L_SC + 4608
L_XRES = L_SC + 9216
L_OB = L_SC + 9472
L_XB = L_SC + 10240
L_QB = L_SC + 12288
L_Q1 = L_SC + 12544

def header():
    return f"""; generated by dev/gen.py
; @launch grid=(256,1,1) block=(512,1,1) lds=163840
.amdgcn_target "amdgcn-amd-amdhsa--gfx950"
.text
"""

def kd(name, vgpr, sgpr):
    return f""".section .rodata,"a"
.p2align 6
.amdhsa_kernel {name}
  .amdhsa_next_free_vgpr {vgpr}
  .amdhsa_next_free_sgpr {sgpr}
  .amdhsa_accum_offset {(vgpr+3)//4*4}
  .amdhsa_group_segment_fixed_size 0
  .amdhsa_kernarg_size 88
  .amdhsa_user_sgpr_count 2
  .amdhsa_user_sgpr_kernarg_segment_ptr 1
  .amdhsa_system_sgpr_workgroup_id_x 1
.end_amdhsa_kernel
.text
"""

DPP = "row_mask:0xf bank_mask:0xf"

def v(n): return f"v{n}"
def vr(n, k): return f"v[{n}:{n+k-1}]"

def allreduce_add(a, x, t):
    for r in (8, 4, 2, 1):
        a(f"v_add_f32_dpp v{x}, v{x}, v{x} row_ror:{r} {DPP}")
    for sw in (16, 32):
        a(f"v_mov_b32 v{t}, v{x}")
        a(f"v_permlane{sw}_swap_b32 v{x}, v{t}")
        a(f"v_add_f32 v{x}, v{x}, v{t}")

def wave_reduce4(a, r0, r1, r2, r3):
    a(f"v_permlane32_swap_b32 v{r0}, v{r2}")
    a(f"v_permlane32_swap_b32 v{r1}, v{r3}")
    a(f"v_add_f32 v{r0}, v{r0}, v{r2}")
    a(f"v_add_f32 v{r1}, v{r1}, v{r3}")
    a(f"v_permlane16_swap_b32 v{r0}, v{r1}")
    a(f"v_add_f32 v{r0}, v{r0}, v{r1}")
    for r in (8, 4, 2, 1):
        a(f"v_add_f32_dpp v{r0}, v{r0}, v{r0} row_ror:{r} {DPP}")

def bfround(a, x, t):
    a(f"v_cvt_pk_bf16_f32 v{t}, v{x}, v{x}")
    a(f"v_lshlrev_b32 v{x}, 16, v{t}")

def bfround2(a, x, y, t):
    a(f"v_cvt_pk_bf16_f32 v{t}, v{x}, v{y}")
    a(f"v_lshlrev_b32 v{x}, 16, v{t}")
    a(f"v_and_b32 v{y}, 0xffff0000, v{t}")

def layernorm(a, x, xp, t0, t1, t2):
    a(f"v_add_f32 v{t0}, v{x[0]}, v{x[1]}")
    for i in range(2, 8):
        a(f"v_add_f32 v{t0}, v{t0}, v{x[i]}")
    allreduce_add(a, t0, t1)
    a(f"v_mul_f32 v{t0}, 0x{INV512:x}, v{t0}")
    a(f"v_sub_f32 v{t2}, v{x[0]}, v{t0}")
    a(f"v_mul_f32 v{t1}, v{t2}, v{t2}")
    for i in range(1, 8):
        a(f"v_sub_f32 v{t2}, v{x[i]}, v{t0}")
        a(f"v_fma_f32 v{t1}, v{t2}, v{t2}, v{t1}")
    allreduce_add(a, t1, t2)
    a(f"v_mul_f32 v{t1}, 0x{INV512:x}, v{t1}")
    bfround2(a, t0, t1, t2)
    a(f"v_add_f32 v{t1}, 0x{EPS:x}, v{t1}")
    bfround(a, t1, t2)
    a(f"v_sqrt_f32 v{t1}, v{t1}")
    bfround(a, t1, t2)
    a(f"v_rcp_f32 v{t1}, v{t1}")
    for p in range(4):
        x0, x1 = x[2*p], x[2*p+1]
        a(f"v_sub_f32 v{x0}, v{x0}, v{t0}")
        a(f"v_sub_f32 v{x1}, v{x1}, v{t0}")
        bfround2(a, x0, x1, t2)
        a(f"v_mul_f32 v{x0}, v{x0}, v{t1}")
        a(f"v_mul_f32 v{x1}, v{x1}, v{t1}")
        a(f"v_cvt_pk_bf16_f32 v{xp[p]}, v{x0}, v{x1}")

def srd(a, d, pair, nbytes):
    a(f"s_mov_b32 s{d}, s{pair}")
    a(f"s_and_b32 s{d+1}, s{pair+1}, 0xffff")
    a(f"s_mov_b32 s{d+2}, 0x{nbytes:x}")
    a(f"s_mov_b32 s{d+3}, 0x00020000")

def gen_init():
    a = Asm()
    a.raw(".globl init_kernel\n.p2align 8\n.type init_kernel,@function\ninit_kernel:")
    a("s_cmp_ge_u32 s2, 256")
    a("s_cbranch_scc1 init_end")
    a("s_load_dwordx2 s[4:5], s[0:1], 0")
    a("s_load_dwordx2 s[6:7], s[0:1], 24")
    a("s_load_dwordx2 s[8:9], s[0:1], 80")
    a("s_waitcnt lgkmcnt(0)")
    srd(a, 12, 4, 8*512*2)
    srd(a, 16, 6, 512*4096*2)
    srd(a, 20, 8, 1 << 30)
    if PROFILE:
        a("s_memrealtime s[34:35]")
    a("v_and_b32 v1, 63, v0")
    a("v_lshrrev_b32 v2, 6, v0")
    a("v_readfirstlane_b32 s24, v2")
    a("v_lshlrev_b32 v3, 4, v1")
    for b in range(8):
        a(f"buffer_load_dwordx4 {vr(8+4*b,4)}, v3, s[12:15], 0 offen offset:{b*1024}" if b < 4 else
          f"buffer_load_dwordx4 {vr(8+4*b,4)}, v4, s[12:15], 0 offen offset:{(b-4)*1024}")
        if b == 0:
            a("v_add_u32 v4, 0x1000, v3")
    a("s_lshl_b32 s25, s2, 5")
    a("s_lshl_b32 s26, s24, 3")
    a("s_add_u32 s25, s25, s26")
    a("v_lshlrev_b32 v5, 16, v1")
    for i in range(8):
        a(f"s_add_u32 s26, s25, {i*8192}")
        a(f"buffer_load_dwordx2 {vr(40+2*i,2)}, v5, s[16:19], s26 offen")
    a("v_mov_b32 v60, -1"); a("v_mov_b32 v61, -1"); a("v_mov_b32 v62, -1"); a("v_mov_b32 v63, -1")
    a("v_lshlrev_b32 v6, 4, v0")
    a(f"s_mul_i32 s27, s2, {NFILL*4096}")
    a(f"s_add_u32 s27, s27, 0x{WS_AREA:x}")
    for i in range(NFILL):
        a(f"buffer_store_dwordx4 v[60:63], v6, s[20:23], s27 offen")
        if i < NFILL-1: a("s_add_u32 s27, s27, 0x1000")
    a(f"s_waitcnt vmcnt({8+NFILL})")
    for b in range(8):
        base = 8 + 4*b
        xs = list(range(64, 72))
        for p in range(4):
            a(f"v_lshlrev_b32 v{xs[2*p]}, 16, v{base+p}")
            a(f"v_and_b32 v{xs[2*p+1]}, 0xffff0000, v{base+p}")
        layernorm(a, xs, [base+p for p in range(4)], 72, 73, 74)
    a(f"s_waitcnt vmcnt({NFILL})")
    a("s_mov_b32 s28, 0x05040100"); a("s_mov_b32 s29, 0x07060302")
    for p in range(4):
        r = 40 + 4*p
        a(f"v_perm_b32 v{76+4*p}, v{r+2}, v{r}, s28")
        a(f"v_perm_b32 v{77+4*p}, v{r+2}, v{r}, s29")
        a(f"v_perm_b32 v{78+4*p}, v{r+3}, v{r+1}, s28")
        a(f"v_perm_b32 v{79+4*p}, v{r+3}, v{r+1}, s29")
    a("v_lshrrev_b32 v5, 4, v1")
    a("v_lshlrev_b32 v5, 1, v5")
    a("v_and_b32 v6, 15, v1")
    a("v_cmp_eq_u32 vcc, 0, v6")
    a("s_mov_b64 s[30:31], vcc")
    for b in range(8):
        base = 8 + 4*b
        acc = [64, 65, 66, 67]
        for c in range(4):
            a(f"v_dot2_f32_bf16 v{acc[c]}, v{76+c}, v{base}, 0")
        for p in range(1, 4):
            for c in range(4):
                a(f"v_dot2_f32_bf16 v{acc[c]}, v{76+4*p+c}, v{base+p}, v{acc[c]}")
        wave_reduce4(a, *acc)
        a(f"v_cvt_pk_bf16_f32 v68, v64, v64")
        a(f"s_add_u32 s26, s25, {WS_Q1 + b*8192}")
        a("s_mov_b64 exec, s[30:31]")
        a(f"buffer_store_short v68, v5, s[20:23], s26 offen")
        a("s_mov_b64 exec, -1")
    if PROFILE:
        a("s_memrealtime s[36:37]")
        a("s_waitcnt lgkmcnt(0)")
        a("v_mov_b32 v8, s34"); a("v_mov_b32 v9, s35"); a("v_mov_b32 v10, s36"); a("v_mov_b32 v11, s37")
        a("s_lshl_b32 s26, s2, 4")
        a(f"s_add_u32 s26, s26, {WS_PROF + 0x140000}")
        a("s_mov_b64 exec, 1")
        a("buffer_store_dwordx4 v[8:11], off, s[20:23], s26")
    a.raw("init_end:")
    a("s_endpgm")
    return a.text() + kd("init_kernel", 96, 40)

KB = 28
VB = 156
NVREG = 25
Q = [2, 3, 4, 5]
ACC = list(range(6, 14))
M, L = 14, 15
S = list(range(16, 24))
PL = [24, 25]; PH = [26, 27]

sG, sC, sH, sJ, sW, sTW, sTEAM, sSTEP, sAREA, sAREA0, sKV, sTO = 20, 21, 22, 23, 24, 25, 26, 27, 28, 29, 30, 31
sT0, sT1, sT2, sT3 = 32, 33, 34, 35
sEX = 36
sEX2 = 38
sHP = 40
sVL = 52
sAREAN = 53
SRD_K, SRD_V, SRD_WS, SRD_X, SRD_OUT, SRD_W, SRD_DBG = 4, 8, 12, 16, 56, 60, 92
sQO, sKV0 = 38, 39

def stamp(a, idx, r=22):
    if not PROFILE: return
    a("s_memrealtime s[86:87]")
    a(f"s_lshl_b32 s88, s2, 3")
    a(f"s_add_u32 s88, s88, s{sW}")
    a(f"s_mul_i32 s88, s88, 5")
    a(f"s_add_u32 s88, s88, s{sSTEP}")
    a(f"s_lshl_b32 s88, s88, 7")
    a(f"s_add_u32 s88, s88, {WS_PROF + idx*8}")
    a("s_waitcnt lgkmcnt(0)")
    a("s_mov_b64 s[90:91], exec")
    a("s_mov_b64 exec, 1")
    a(f"v_mov_b32 v{r}, s86")
    a(f"v_mov_b32 v{r+1}, s87")
    a(f"buffer_store_dwordx2 v[{r}:{r+1}], off, s[{SRD_WS}:{SRD_WS+3}], s88")
    a("s_mov_b64 exec, s[90:91]")

def poll(a, loads, regs, tmp):
    lp = a.newlabel("poll"); dn = a.newlabel("polld")
    a.label(lp)
    for l in loads: a(l)
    a("s_waitcnt vmcnt(0)")
    rs = list(regs)
    if len(rs) == 1:
        a(f"v_cmp_eq_u32 vcc, -1, v{rs[0]}")
    else:
        if len(rs) == 2:
            a(f"v_max_u32 v{tmp}, v{rs[0]}, v{rs[1]}"); rs = []
        else:
            a(f"v_max3_u32 v{tmp}, v{rs[0]}, v{rs[1]}, v{rs[2]}"); rs = rs[3:]
        while rs:
            if len(rs) >= 2:
                a(f"v_max3_u32 v{tmp}, v{tmp}, v{rs[0]}, v{rs[1]}"); rs = rs[2:]
            else:
                a(f"v_max_u32 v{tmp}, v{tmp}, v{rs[0]}"); rs = rs[1:]
        a(f"v_cmp_eq_u32 vcc, -1, v{tmp}")
    a(f"s_cbranch_vccz {dn}")
    a("s_sleep 1")
    a(f"s_sub_u32 s{sTO}, s{sTO}, 1")
    a(f"s_cbranch_scc0 {lp}")
    a("s_branch main_bail")
    a.label(dn)

DEPTH = int(os.environ.get("DEPTH", "64"))
RG = int(os.environ.get("RG", "6"))
def issue_group(a, gi):
    ch, sub = gi // 4, gi % 4
    half = sub & 1
    a(f"s_add_u32 s{sT2}, s{sKV}, {(8*ch+4*half)*1024}")
    for i in range(4):
        n = 8*ch + 4*half + i
        if sub < 2:
            a(f"buffer_load_dwordx4 {vr(KB+4*n,4)}, v0, s[{SRD_K}:{SRD_K+3}], s{sT2} offen offset:{i*1024} nt")
        elif n < NVREG:
            a(f"buffer_load_dwordx4 {vr(VB+4*n,4)}, v0, s[{SRD_V}:{SRD_V+3}], s{sT2} offen offset:{i*1024} nt")
        else:
            a(f"s_add_u32 s{sT3}, s{sVL}, {(n-NVREG)*1024}")
            a(f"s_mov_b32 m0, s{sT3}")
            a(f"s_add_u32 s{sT3}, s{sKV}, {n*1024}")
            a(f"buffer_load_dwordx4 v0, s[{SRD_V}:{SRD_V+3}], s{sT3} offen nt lds")

def need_groups(a, st, upto):
    while st[1] < upto:
        st[1] += 1
    a(f"s_waitcnt vmcnt({4*(16-st[1])})")

def attention(a, first, refill=False):
    st = [16, 0]
    for r in ACC: a(f"v_mov_b32 v{r}, 0")
    a(f"v_mov_b32 v{M}, 0xff7fffff")
    a(f"v_mov_b32 v{L}, 0")
    for ch in range(4):
        if first: need_groups(a, st, 4*ch + 2)
        for r in range(4):
            for i in range(8):
                k = KB + 4*(8*ch + i) + r
                if r == 0: a(f"v_dot2_f32_bf16 v{S[i]}, v{k}, v{Q[0]}, 0")
                else: a(f"v_dot2_f32_bf16 v{S[i]}, v{k}, v{Q[r]}, v{S[i]}")
        if refill and 4*ch < RG:
            lr = a.newlabel("norefk")
            a(f"s_cbranch_scc1 {lr}") if False else None
            a(f"s_cmp_eq_u32 s{sSTEP}, 3")
            a(f"s_cbranch_scc1 {lr}")
            issue_group(a, 4*ch); issue_group(a, 4*ch+1)
            a.label(lr)
        for i in range(4):
            a(f"v_add_f32_dpp v{S[i]}, v{S[i]}, v{S[i]} row_mirror row_mask:0xf bank_mask:0x3")
            a(f"v_add_f32_dpp v{S[i]}, v{S[i+4]}, v{S[i+4]} row_mirror row_mask:0xf bank_mask:0xc")
        for i in range(2):
            a(f"v_add_f32_dpp v{S[i]}, v{S[i]}, v{S[i]} row_half_mirror row_mask:0xf bank_mask:0x5")
            a(f"v_add_f32_dpp v{S[i]}, v{S[i+2]}, v{S[i+2]} row_half_mirror row_mask:0xf bank_mask:0xa")
        for e in range(2):
            a(f"v_add_f32_dpp v{S[e]}, v{S[e]}, v{S[e]} quad_perm:[2,3,0,1] {DPP}")
        for e in range(2):
            a(f"v_add_f32_dpp v{S[e]}, v{S[e]}, v{S[e]} quad_perm:[1,0,3,2] {DPP}")
        t0, t1, t2 = S[2], S[3], S[4]
        bfround2(a, S[0], S[1], t0)
        a(f"v_mul_f32 v{S[0]}, 0x{SCALE:x}, v{S[0]}")
        a(f"v_mul_f32 v{S[1]}, 0x{SCALE:x}, v{S[1]}")
        bfround2(a, S[0], S[1], t0)
        a(f"v_max_f32 v{t0}, v{S[0]}, v{S[1]}")
        a(f"v_max_f32_dpp v{t0}, v{t0}, v{t0} row_half_mirror {DPP}")
        a(f"v_max_f32_dpp v{t0}, v{t0}, v{t0} row_mirror {DPP}")
        a(f"v_max_f32 v{t0}, v{t0}, v{M}")
        a(f"v_sub_f32 v{t1}, v{M}, v{t0}")
        a(f"v_sub_f32 v{S[0]}, v{S[0]}, v{t0}")
        a(f"v_sub_f32 v{S[1]}, v{S[1]}, v{t0}")
        a(f"v_mul_f32 v{t1}, 0x{LOG2E:x}, v{t1}")
        a(f"v_mul_f32 v{S[0]}, 0x{LOG2E:x}, v{S[0]}")
        a(f"v_mul_f32 v{S[1]}, 0x{LOG2E:x}, v{S[1]}")
        a(f"v_exp_f32 v{t1}, v{t1}")
        a(f"v_exp_f32 v{S[0]}, v{S[0]}")
        a(f"v_exp_f32 v{S[1]}, v{S[1]}")
        a(f"v_mov_b32 v{M}, v{t0}")
        a(f"v_cvt_pk_bf16_f32 v{PL[0]}, v{S[0]}, 0")
        a(f"v_cvt_pk_bf16_f32 v{PL[1]}, v{S[1]}, 0")
        a(f"v_fma_f32 v{L}, v{L}, v{t1}, v{S[0]}")
        a(f"v_lshlrev_b32 v{PH[0]}, 16, v{PL[0]}")
        a(f"v_lshlrev_b32 v{PH[1]}, 16, v{PL[1]}")
        a(f"v_add_f32 v{L}, v{L}, v{S[1]}")
        for r in ACC: a(f"v_mul_f32 v{r}, v{r}, v{t1}")
        if first: need_groups(a, st, 4*ch + 4)
        for i in range(8):
            vi = 8*ch + i
            e = i & 1
            src = 8*(i >> 2) + 4*((i >> 1) & 1)
            if vi < NVREG:
                vb = VB + 4*vi
            else:
                vb = S[2] + 4*((vi - NVREG) & 0)
                a(f"ds_read_b128 {vr(S[2],4)}, v1 offset:{(vi-NVREG)*1024}")
                a("s_waitcnt lgkmcnt(0)")
            for r in range(4):
                a(f"v_dot2c_f32_bf16_dpp v{ACC[2*r]}, v{PL[e]}, v{vb+r} row_newbcast:{src} {DPP}")
                a(f"v_dot2c_f32_bf16_dpp v{ACC[2*r+1]}, v{PH[e]}, v{vb+r} row_newbcast:{src} {DPP}")
        if refill and 4*ch+2 < RG:
            lr = a.newlabel("norefv")
            a(f"s_cmp_eq_u32 s{sSTEP}, 3")
            a(f"s_cbranch_scc1 {lr}")
            issue_group(a, 4*ch+2); issue_group(a, 4*ch+3)
            a.label(lr)


def lane_id(a, r):
    a(f"v_mbcnt_lo_u32_b32 v{r}, -1, 0")
    a(f"v_mbcnt_hi_u32_b32 v{r}, -1, v{r}")

def epilogue(a, lscr, s_area):
    t0, t1, t2, t3 = S[0], S[1], S[2], S[3]
    a(f"v_mov_b32 v{t0}, v{M}")
    a(f"v_mov_b32 v{t1}, v{M}")
    a(f"v_permlane16_swap_b32 v{t0}, v{t1}")
    a(f"v_max_f32 v{t0}, v{t0}, v{t1}")
    a(f"v_mov_b32 v{t1}, v{t0}")
    a(f"v_permlane32_swap_b32 v{t0}, v{t1}")
    a(f"v_max_f32 v{t0}, v{t0}, v{t1}")
    a(f"v_sub_f32 v{t1}, v{M}, v{t0}")
    a(f"v_mul_f32 v{t1}, 0x{LOG2E:x}, v{t1}")
    a(f"v_exp_f32 v{t1}, v{t1}")
    a(f"v_mul_f32 v{L}, v{L}, v{t1}")
    for r in ACC: a(f"v_mul_f32 v{r}, v{r}, v{t1}")
    a(f"v_add_f32_dpp v{L}, v{L}, v{L} row_half_mirror {DPP}")
    a(f"v_add_f32_dpp v{L}, v{L}, v{L} row_mirror {DPP}")
    for sw in (16, 32):
        a(f"v_mov_b32 v{t1}, v{L}")
        a(f"v_permlane{sw}_swap_b32 v{L}, v{t1}")
        a(f"v_add_f32 v{L}, v{L}, v{t1}")
    for k in range(4):
        a(f"v_permlane32_swap_b32 v{ACC[k]}, v{ACC[k+4]}")
    for k in range(4):
        a(f"v_add_f32 v{ACC[k]}, v{ACC[k]}, v{ACC[k+4]}")
    for k in range(2):
        a(f"v_permlane16_swap_b32 v{ACC[k]}, v{ACC[k+2]}")
    for k in range(2):
        a(f"v_add_f32 v{ACC[k]}, v{ACC[k]}, v{ACC[k+2]}")
    lane_id(a, t2)
    a(f"v_and_b32 v{t3}, 15, v{t2}")
    a(f"v_lshlrev_b32 v{t3}, 5, v{t3}")
    a(f"v_lshrrev_b32 v{t1}, 4, v{t2}")
    a(f"v_lshl_add_u32 v{t3}, v{t1}, 3, v{t3}")
    a(f"s_lshl_b32 s{sT0}, s{sW}, 9")
    a(f"s_add_u32 s{sT0}, s{sT0}, {lscr}")
    a(f"v_add_u32 v{t3}, s{sT0}, v{t3}")
    a(f"ds_write_b64 v{t3}, {vr(ACC[0],2)}")
    a(f"v_mov_b32 v{ACC[2]}, v{t0}")
    a(f"v_mov_b32 v{ACC[3]}, v{L}")
    a(f"s_lshl_b32 s{sT0}, s{sW}, 3")
    a(f"s_add_u32 s{sT0}, s{sT0}, {lscr + 4096}")
    a(f"v_mov_b32 v{t3}, s{sT0}")
    a(f"ds_write_b64 v{t3}, {vr(ACC[2],2)}")
    a("s_waitcnt lgkmcnt(0)")
    a("s_barrier")
    skip = a.newlabel("ep_skip")
    a(f"s_cmp_ge_u32 s{sW}, 2")
    a(f"s_cbranch_scc1 {skip}")
    lane_id(a, 26)
    a(f"s_lshl_b32 s{sT0}, s{sW}, 8")
    a(f"s_add_u32 s{sT0}, s{sT0}, {lscr}")
    a(f"v_lshlrev_b32 v26, 2, v26")
    a(f"v_add_u32 v26, s{sT0}, v26")
    a(f"v_mov_b32 v27, {lscr + 4096}")
    for w in range(8):
        a(f"ds_read_b32 v{2+w}, v26 offset:{w*512}")
    for w in range(4):
        a(f"ds_read_b128 {vr(10+4*w,4)}, v27 offset:{w*16}")
    a("s_waitcnt lgkmcnt(0)")
    a("v_max3_f32 v26, v10, v12, v14")
    a("v_max3_f32 v26, v26, v16, v18")
    a("v_max3_f32 v26, v26, v20, v22")
    a("v_max_f32 v26, v26, v24")
    for w in range(8):
        a(f"v_sub_f32 v{10+2*w}, v{10+2*w}, v26")
    for w in range(8):
        a(f"v_mul_f32 v{10+2*w}, 0x{LOG2E:x}, v{10+2*w}")
    for w in range(8):
        a(f"v_exp_f32 v{10+2*w}, v{10+2*w}")
    a("v_mul_f32 v2, v2, v10")
    a("v_mul_f32 v27, v11, v10")
    for w in range(1, 8):
        a(f"v_fma_f32 v2, v{2+w}, v{10+2*w}, v2")
        a(f"v_fma_f32 v27, v{11+2*w}, v{10+2*w}, v27")
    lane_id(a, 3)
    a("v_lshlrev_b32 v4, 2, v3")
    a(f"s_mul_i32 s{sT0}, s{sC}, {REC_STRIDE}")
    a(f"s_add_u32 s{sT0}, s{sT0}, s{s_area}")
    a(f"s_lshl_b32 s{sT1}, s{sW}, 8")
    a(f"s_add_u32 s{sT1}, s{sT1}, s{sT0}")
    a(f"buffer_store_dword v2, v4, s[{SRD_WS}:{SRD_WS+3}], s{sT1} offen offset:{O_REC} sc1")
    a(f"s_cmp_lg_u32 s{sW}, 0")
    a(f"s_cbranch_scc1 {skip}")
    a("v_cmp_eq_u32 vcc, 0, v3")
    a(f"s_and_saveexec_b64 s[{sEX}:{sEX+1}], vcc")
    a(f"buffer_store_dwordx2 v[26:27], v4, s[{SRD_WS}:{SRD_WS+3}], s{sT0} offen offset:{O_REC+512} sc1")
    a(f"s_mov_b64 exec, -1")
    a.label(skip)

SG_WO, SG_WQ, SG_W12 = 124, 140, 16
def stage_loads(a):
    srd(a, SRD_W, 74, 4096*512*2)
    a("v_lshrrev_b32 v4, 2, v3")
    a("v_lshlrev_b32 v4, 13, v4")
    a("v_and_b32 v5, 3, v3")
    a("v_lshl_add_u32 v4, v5, 4, v4")
    a(f"s_lshl_b32 s{sT0}, s{sH}, 17")
    a(f"s_lshl_b32 s{sT1}, s{sJ}, 8")
    a(f"s_add_u32 s{sT0}, s{sT0}, s{sT1}")
    a(f"s_lshl_b32 s{sT1}, s{sTW}, 6")
    a(f"s_add_u32 s{sT0}, s{sT0}, s{sT1}")
    a(f"s_lshl_b32 s{sT1}, s{sTEAM}, 12")
    a(f"s_add_u32 s{sT0}, s{sT0}, s{sT1}")
    for i in range(4):
        a(f"buffer_load_dwordx4 {vr(SG_WO+4*i,4)}, v4, s[{SRD_W}:{SRD_W+3}], s{sT0} offen offset:{i*1024}")
    srd(a, SRD_W, 72, 512*4096*2)
    a("v_lshrrev_b32 v4, 2, v3")
    a("v_lshlrev_b32 v4, 14, v4")
    a("v_and_b32 v5, 3, v3")
    a("v_lshl_add_u32 v4, v5, 4, v4")
    a(f"s_lshl_b32 s{sT0}, s{sC}, 6")
    a(f"s_lshl_b32 s{sT1}, s{sW}, 19")
    a(f"s_add_u32 s{sT0}, s{sT0}, s{sT1}")
    for t in range(2):
        for r in range(2):
            a(f"buffer_load_dwordx4 {vr(SG_WQ+8*t+4*r,4)}, v4, s[{SRD_W}:{SRD_W+3}], s{sT0} offen")
            if not (t == 1 and r == 1):
                a(f"s_add_u32 s{sT0}, s{sT0}, {8192 if r == 0 else 16*2*8192 - 8192}")
    l_w2 = a.newlabel("ld_w2"); l_wdone = a.newlabel("ld_wdone")
    a(f"s_cmp_eq_u32 s{sTEAM}, 1")
    a(f"s_cbranch_scc1 {l_w2}")
    srd(a, SRD_W, 76, 512*1376*2)
    a(f"s_movk_i32 s{sT1}, {8*2752}")
    a(f"v_mul_lo_u32 v4, s{sT1}, v3")
    a(f"s_mul_i32 s{sT0}, s{sC}, 24")
    a(f"s_mul_i32 s{sT1}, s{sTW}, {2*2752}")
    a(f"s_add_u32 s{sT0}, s{sT0}, s{sT1}")
    for r in range(2):
        for q in range(3):
            a(f"buffer_load_dwordx2 {vr(SG_W12+6*r+2*q,2)}, v4, s[{SRD_W}:{SRD_W+3}], s{sT0} offen offset:{r*2752+q*8}")
    a(f"s_branch {l_wdone}")
    a.label(l_w2)
    srd(a, SRD_W, 78, 1376*512*2)
    a("v_lshlrev_b32 v4, 2, v3")
    a(f"s_mul_i32 s{sT0}, s{sC}, {12*1024}")
    a(f"s_lshl_b32 s{sT1}, s{sTW}, 8")
    a(f"s_add_u32 s{sT0}, s{sT0}, s{sT1}")
    for k in range(12):
        a(f"buffer_load_dword v{SG_W12+k}, v4, s[{SRD_W}:{SRD_W+3}], s{sT0} offen offset:{(k%4)*1024}")
        if k % 4 == 3 and k < 11: a(f"s_add_u32 s{sT0}, s{sT0}, 4096")
    a.label(l_wdone)

def stage_finish(a):
    a(f"s_lshl_b32 s{sT0}, s{sTEAM}, 14")
    a(f"s_lshl_b32 s{sT1}, s{sTW}, 10")
    a(f"s_add_u32 s{sT0}, s{sT0}, s{sT1}")
    a(f"s_add_u32 s{sT0}, s{sT0}, {L_WO}")
    a(f"v_add_u32 v7, s{sT0}, v0")
    for u in range(2):
        ra, rb = SG_WO + 8*u, SG_WO + 4 + 8*u
        for half in range(2):
            for z in range(2):
                d = 2*half + z
                a(f"v_perm_b32 v{8+2*z}, v{rb+d}, v{ra+d}, s84")
                a(f"v_perm_b32 v{9+2*z}, v{rb+d}, v{ra+d}, s85")
            a(f"ds_write_b128 v7, v[8:11] offset:{(u*2+half)*4096}")
    a("v_lshrrev_b32 v7, 6, v0")
    a("v_and_b32 v8, 3, v7")
    a("v_lshrrev_b32 v7, 2, v7")
    a("v_lshlrev_b32 v7, 4, v7")
    a("v_lshl_add_u32 v7, v8, 13, v7")
    a("v_bfe_u32 v8, v0, 4, 2")
    a("v_lshl_add_u32 v7, v8, 11, v7")
    a(f"s_lshl_b32 s{sT0}, s{sW}, 7")
    a(f"s_add_u32 s{sT0}, s{sT0}, {L_WQ}")
    a(f"v_add_u32 v7, s{sT0}, v7")
    for t in range(2):
        ra, rb = SG_WQ + 8*t, SG_WQ + 8*t + 4
        for half in range(2):
            for z in range(2):
                d = 2*half + z
                a(f"v_perm_b32 v{8+2*z}, v{rb+d}, v{ra+d}, s84")
                a(f"v_perm_b32 v{9+2*z}, v{rb+d}, v{ra+d}, s85")
            a(f"ds_write_b128 v7, v[8:11] offset:{t*64 + half*1024}")
    l_p2 = a.newlabel("pm_w2"); l_pdone = a.newlabel("pm_done"); l_nomask = a.newlabel("nomask")
    a(f"s_cmp_eq_u32 s{sTEAM}, 1")
    a(f"s_cbranch_scc1 {l_p2}")
    a(f"s_cmp_lg_u32 s{sC}, 114")
    a(f"s_cbranch_scc1 {l_nomask}")
    for r in (4, 5, 10, 11): a(f"v_mov_b32 v{SG_W12+r}, 0")
    a.label(l_nomask)
    a(f"s_mul_i32 s{sT0}, s{sTW}, 3072")
    a(f"s_add_u32 s{sT0}, s{sT0}, {L_W1}")
    a(f"v_add_u32 v7, s{sT0}, v0")
    for q in range(3):
        ra, rb = SG_W12 + 2*q, SG_W12 + 6 + 2*q
        a(f"v_perm_b32 v8, v{rb}, v{ra}, s84")
        a(f"v_perm_b32 v9, v{rb}, v{ra}, s85")
        a(f"v_perm_b32 v10, v{rb+1}, v{ra+1}, s84")
        a(f"v_perm_b32 v11, v{rb+1}, v{ra+1}, s85")
        a(f"ds_write_b128 v7, v[8:11] offset:{q*1024}")
    a(f"s_branch {l_pdone}")
    a.label(l_p2)
    a(f"s_lshl_b32 s{sT0}, s{sTW}, 10")
    a(f"s_add_u32 s{sT0}, s{sT0}, {L_W2}")
    a(f"v_add_u32 v7, s{sT0}, v0")
    for n in range(3):
        for z in range(2):
            k = SG_W12 + 4*n + 2*z
            a(f"v_perm_b32 v{8+2*z}, v{k+1}, v{k}, s84")
            a(f"v_perm_b32 v{9+2*z}, v{k+1}, v{k}, s85")
        a(f"ds_write_b128 v7, v[8:11] offset:{n*4096}")
    a.label(l_pdone)
    a("s_waitcnt lgkmcnt(0)")

def load_q1s(a):
    a("v_and_b32 v6, 0xf0, v0")
    a("v_lshrrev_b32 v7, 8, v0")
    a("v_lshl_add_u32 v7, v7, 14, v6")
    a(f"s_lshl_b32 s{sQO}, s{sG}, 13")
    a(f"s_lshl_b32 s{sT2}, s{sH}, 8")
    a(f"s_add_u32 s{sQO}, s{sQO}, s{sT2}")
    a(f"buffer_load_dwordx4 v[8:11], v7, s[{SRD_WS}:{SRD_WS+3}], s{sQO} offen offset:{WS_Q1} sc1")
    a(f"v_add_u32 v7, {L_Q1}, v0")
    a("s_waitcnt vmcnt(0)")
    a("ds_write_b128 v7, v[8:11]")
    a("s_waitcnt lgkmcnt(0)")

def wait_counter(a):
    lp = a.newlabel("wc"); dn = a.newlabel("wcd")
    a("v_mov_b32 v9, 0")
    a.label(lp)
    a(f"buffer_load_dword v8, v9, s[{SRD_DBG}:{SRD_DBG+3}], 0 offen sc1")
    a("s_waitcnt vmcnt(0)")
    a("v_cmp_gt_u32 vcc, 128, v8")
    a(f"s_cbranch_vccz {dn}")
    a("s_sleep 2")
    a(f"s_sub_u32 s{sTO}, s{sTO}, 1")
    a(f"s_cbranch_scc0 {lp}")
    a("s_branch main_bail")
    a.label(dn)

def gen_main():
    a = Asm()
    a.raw(f".globl {NAME}_kernel\n.p2align 8\n.type {NAME}_kernel,@function\n{NAME}_kernel:")
    a("s_cmp_ge_u32 s2, 256")
    a("s_cbranch_scc1 main_end")
    a("s_load_dwordx4 s[64:67], s[0:1], 8")
    a("s_load_dwordx2 s[68:69], s[0:1], 0")
    a("s_load_dwordx4 s[72:75], s[0:1], 24")
    a("s_load_dwordx4 s[76:79], s[0:1], 48")
    a("s_load_dwordx2 s[80:81], s[0:1], 64")
    a("s_load_dwordx2 s[82:83], s[0:1], 80")
    a("s_load_dwordx2 s[70:71], s[0:1], 72")
    a("v_lshrrev_b32 v2, 6, v0")
    a(f"v_readfirstlane_b32 s{sW}, v2")
    a("v_and_b32 v3, 63, v0")
    a("v_lshlrev_b32 v0, 4, v3")
    a(f"s_and_b32 s{sTW}, s{sW}, 3")
    a(f"s_lshr_b32 s{sTEAM}, s{sW}, 2")
    a(f"s_lshr_b32 s{sG}, s2, 3")
    a(f"s_and_b32 s{sG}, s{sG}, 1")
    a(f"s_lshr_b32 s{sC}, s2, 4")
    a(f"s_lshl_b32 s{sC}, s{sC}, 3")
    a(f"s_and_b32 s{sT0}, s2, 7")
    a(f"s_or_b32 s{sC}, s{sC}, s{sT0}")
    a(f"s_lshr_b32 s{sH}, s{sC}, 2")
    a(f"s_and_b32 s{sJ}, s{sC}, 3")
    a(f"s_mul_i32 s{sVL}, s{sW}, 7168")
    a(f"v_add_u32 v1, s{sVL}, v0")
    a(f"s_mov_b32 s{sTO}, 400000")
    a("s_waitcnt lgkmcnt(0)")
    srd(a, SRD_K, 64, 1 << 28)
    srd(a, SRD_V, 66, 1 << 28)
    srd(a, SRD_WS, 82, 1 << 30)
    srd(a, SRD_X, 68, 8192)
    srd(a, SRD_OUT, 80, 8192)
    srd(a, SRD_DBG, 70, 256)
    a(f"s_lshl_b32 s{sKV0}, s{sC}, 18")
    a(f"s_lshl_b32 s{sT2}, s{sW}, 15")
    a(f"s_add_u32 s{sKV0}, s{sKV0}, s{sT2}")
    a(f"s_mov_b32 s84, 0x05040100"); a(f"s_mov_b32 s85, 0x07060302")
    a(f"s_mov_b32 s{sSTEP}, 0")
    stamp(a, 13, 26)
    stage_loads(a)
    a("s_barrier")
    l_g0 = a.newlabel("g0skip")
    a(f"s_cmp_eq_u32 s{sG}, 0")
    a(f"s_cbranch_scc1 {l_g0}")
    a("s_waitcnt vmcnt(0)")
    stage_finish(a)
    a(f"s_lshl_b32 s{sT0}, s{sW}, 10")
    a(f"buffer_load_dwordx4 v[10:13], v0, s[{SRD_X}:{SRD_X+3}], s{sT0} offen")
    for r in range(4): a(f"v_mov_b32 v{20+r}, -1")
    a(f"s_lshl_b32 s{sT0}, s{sW}, 10")
    a(f"v_add_u32 v24, s{sT0}, v0")
    a(f"s_mul_i32 s{sT0}, s{sC}, {NFILL*8192}")
    a(f"s_add_u32 s{sT0}, s{sT0}, {WS_AREA}")
    for i in range(NFILL):
        a(f"buffer_store_dwordx4 v[20:23], v24, s[{SRD_WS}:{SRD_WS+3}], s{sT0} offen sc1")
        if i < NFILL-1: a(f"s_add_u32 s{sT0}, s{sT0}, 0x2000")
    a(f"s_waitcnt vmcnt({NFILL})")
    for p in range(4):
        a(f"v_lshlrev_b32 v{2+2*p}, 16, v{10+p}")
        a(f"v_and_b32 v{3+2*p}, 0xffff0000, v{10+p}")
    layernorm(a, list(range(2, 10)), [10, 11, 12, 13], 14, 15, 16)
    a(f"s_lshl_b32 s{sT0}, s{sW}, 10")
    a(f"s_add_u32 s{sT0}, s{sT0}, {L_SC}")
    a(f"v_add_u32 v26, s{sT0}, v0")
    a("ds_write_b128 v26, v[10:13]")
    a("s_waitcnt lgkmcnt(0)")
    a("s_barrier")
    a(f"s_lshl_b32 s{sT0}, s{sW}, 10")
    a(f"s_add_u32 s{sT0}, s{sT0}, {L_WQ}")
    a(f"v_add_u32 v26, s{sT0}, v0")
    for p in range(4):
        a(f"ds_read_b128 {vr(32+4*p,4)}, v26 offset:{p*8192}")
    a(f"v_add_u32 v26, {L_SC}, v0")
    a("v_mov_b32 v25, 0")
    a(f"s_lshl_b32 s{sT2}, s{sC}, 6")
    a(f"s_lshl_b32 s{sT1}, s{sW}, 3")
    a(f"s_add_u32 s{sT2}, s{sT2}, s{sT1}")
    for b in range(8):
        a(f"ds_read_b128 v[10:13], v26 offset:{b*1024}")
        a("s_waitcnt lgkmcnt(0)")
        for p in range(4):
            for c in range(4):
                if p == 0: a(f"v_dot2_f32_bf16 v{2+c}, v{32+c}, v10, 0")
                else: a(f"v_dot2_f32_bf16 v{2+c}, v{32+4*p+c}, v{10+p}, v{2+c}")
        wave_reduce4(a, 2, 3, 4, 5)
        bfround(a, 2, 6)
        for rho in range(4):
            a(f"v_readlane_b32 s{sHP+rho}, v2, {16*rho}")
        a(f"s_pack_hh_b32_b16 s{sHP}, s{sHP}, s{sHP+1}")
        a(f"s_pack_hh_b32_b16 s{sHP+1}, s{sHP+2}, s{sHP+3}")
        a(f"v_mov_b32 v2, s{sHP}")
        a(f"v_mov_b32 v3, s{sHP+1}")
        a(f"s_add_u32 s{sT0}, s{sT2}, {WS_Q1 + b*8192}")
        a("s_mov_b64 exec, 1")
        a(f"buffer_store_dwordx2 v[2:3], v25, s[{SRD_WS}:{SRD_WS+3}], s{sT0} offen sc1")
        a("s_mov_b64 exec, -1")
    a("s_waitcnt vmcnt(0)")
    a("s_barrier")
    l_na = a.newlabel("noatom")
    a(f"s_cmp_lg_u32 s{sW}, 0")
    a(f"s_cbranch_scc1 {l_na}")
    a("v_mov_b32 v2, 1")
    a("s_mov_b64 exec, 1")
    a(f"buffer_atomic_add v2, v25, s[{SRD_DBG}:{SRD_DBG+3}], 0 offen sc1")
    a("s_mov_b64 exec, -1")
    a.label(l_na)
    wait_counter(a)
    load_q1s(a)
    a(f"s_mul_i32 s{sT0}, s{sC}, {REC_STRIDE}")
    a(f"s_add_u32 s{sT0}, s{sT0}, {WS_AREA}")
    a("v_mov_b32 v4, 0")
    poll(a, [f"buffer_load_dword v2, v4, s[{SRD_WS}:{SRD_WS+3}], s{sT0} offen offset:{O_REC+512} sc1"], [2], 3)
    a.label(l_g0)
    a.label("step_loop")
    a(f"s_mul_i32 s{sT0}, s{sG}, 5")
    a(f"s_add_u32 s{sT0}, s{sT0}, s{sSTEP}")
    a(f"s_mul_i32 s{sAREA0}, s{sT0}, {2*AREA}")
    a(f"s_add_u32 s{sAREA0}, s{sAREA0}, {WS_AREA}")
    a(f"s_mul_i32 s{sT1}, s{sTEAM}, {AREA}")
    a(f"s_add_u32 s{sAREA}, s{sAREA0}, s{sT1}")
    a(f"s_add_u32 s{sAREAN}, s{sAREA0}, {3*AREA}")
    stamp(a, 0, 12)
    l_noatt = a.newlabel("noatt1")
    a(f"s_cmp_eq_u32 s{sSTEP}, 4")
    a(f"s_cbranch_scc1 {l_noatt}")
    l_s0 = a.newlabel("notstep0"); l_qd = a.newlabel("qdone")
    a(f"s_cmp_lg_u32 s{sSTEP}, 0")
    a(f"s_cbranch_scc1 {l_s0}")
    a(f"s_lshl_b32 s{sKV}, s{sG}, 25")
    a(f"s_add_u32 s{sKV}, s{sKV}, s{sKV0}")
    for gi in range(12): issue_group(a, gi)
    l_ns = a.newlabel("nostage")
    a(f"s_cmp_lg_u32 s{sG}, 0")
    a(f"s_cbranch_scc1 {l_ns}")
    a("s_waitcnt vmcnt(48)")
    stage_finish(a)
    a.label(l_ns)
    for gi in range(12, 16): issue_group(a, gi)
    a(f"s_cmp_lg_u32 s{sG}, 0")
    a(f"s_cbranch_scc1 {l_qd}")
    wait_counter(a)
    load_q1s(a)
    a(f"s_branch {l_qd}")
    a.label(l_s0)
    for gi in range(RG, 16): issue_group(a, gi)
    a.label(l_qd)
    a(f"s_lshl_b32 s{sT0}, s{sSTEP}, 8")
    a(f"s_add_u32 s{sT0}, s{sT0}, {L_Q1}")
    a("v_and_b32 v6, 0xf0, v0")
    a(f"v_add_u32 v6, s{sT0}, v6")
    a(f"ds_read_b128 {vr(Q[0],4)}, v6")
    a("s_waitcnt lgkmcnt(0)")
    attention(a, True)
    stamp(a, 1)
    epilogue(a, L_EP0, sAREA0)
    stamp(a, 2, 26)
    a.label(l_noatt)
    chain(a)
    a(f"s_cmp_eq_u32 s{sSTEP}, 4")
    a("s_cbranch_scc1 main_end")
    stage_q(a)
    stamp(a, 10)
    a(f"s_add_u32 s{sKV}, s{sKV}, {2 << 25}")
    attention(a, False, True)
    stamp(a, 11)
    epilogue(a, L_EP1, sAREAN)
    stamp(a, 12, 26)
    a(f"s_add_u32 s{sSTEP}, s{sSTEP}, 1")
    a("s_branch step_loop")
    a.raw("main_bail:")
    a.raw("main_end:")
    a("s_endpgm")
    sys.stderr.write(f"main: {len(a.lines)} lines, {a.nnops} nops\n")
    return a.text() + kd(f"{NAME}_kernel", 256, 100)

def chain(a):
    ws = f"s[{SRD_WS}:{SRD_WS+3}]"
    sACT, sLEAD = 54, 55
    a(f"s_lshl_b32 s{sT0}, s{sTEAM}, 2")
    a(f"s_sub_u32 s{sT0}, 4, s{sT0}")
    a(f"s_cmp_lg_u32 s{sSTEP}, s{sT0}")
    a(f"s_cselect_b32 s{sACT}, 1, 0")
    a(f"s_cmp_eq_u32 s{sTW}, 0")
    a(f"s_cselect_b32 s{sLEAD}, s{sACT}, 0")
    lane_id(a, 27)
    l1 = a.newlabel("nos1a")
    a(f"s_cmp_eq_u32 s{sLEAD}, 0")
    a(f"s_cbranch_scc1 {l1}")
    a("v_lshlrev_b32 v26, 3, v27")
    a("v_mov_b32 v25, 0")
    a(f"s_mul_i32 s{sT0}, s{sH}, {4*REC_STRIDE}")
    a(f"s_add_u32 s{sT0}, s{sT0}, s{sAREA}")
    loads = []
    for i in range(4):
        loads.append(f"buffer_load_dwordx2 {vr(2+2*i,2)}, v26, {ws}, s{sT0} offen offset:{O_REC+i*REC_STRIDE} sc1")
        loads.append(f"buffer_load_dwordx2 {vr(10+2*i,2)}, v25, {ws}, s{sT0} offen offset:{O_REC+i*REC_STRIDE+512} sc1")
    poll(a, loads, list(range(2, 18)), 24)
    stamp(a, 3, 20)
    a("v_max3_f32 v24, v10, v12, v14")
    a("v_max_f32 v24, v24, v16")
    for i in range(4): a(f"v_sub_f32 v{10+2*i}, v{10+2*i}, v24")
    for i in range(4): a(f"v_mul_f32 v{10+2*i}, 0x{LOG2E:x}, v{10+2*i}")
    for i in range(4): a(f"v_exp_f32 v{10+2*i}, v{10+2*i}")
    a("v_mul_f32 v24, v11, v10")
    a("v_mul_f32 v2, v2, v10")
    a("v_mul_f32 v3, v3, v10")
    for i in range(1, 4):
        a(f"v_fma_f32 v24, v{11+2*i}, v{10+2*i}, v24")
        a(f"v_fma_f32 v2, v{2+2*i}, v{10+2*i}, v2")
        a(f"v_fma_f32 v3, v{3+2*i}, v{10+2*i}, v3")
    a("v_rcp_f32 v24, v24")
    a("v_mul_f32 v2, v2, v24")
    a("v_mul_f32 v3, v3, v24")
    a("v_cvt_pk_bf16_f32 v2, v2, v3")
    a(f"s_lshl_b32 s{sT0}, s{sTEAM}, 8")
    a(f"s_add_u32 s{sT0}, s{sT0}, {L_OB}")
    a("v_lshlrev_b32 v26, 2, v27")
    a(f"v_add_u32 v26, s{sT0}, v26")
    a("ds_write_b32 v26, v2")
    a("s_waitcnt lgkmcnt(0)")
    a.label(l1)
    a("s_barrier")
    l_na1 = a.newlabel("na1")
    a(f"s_cmp_eq_u32 s{sACT}, 0")
    a(f"s_cbranch_scc1 {l_na1}")
    a(f"s_lshl_b32 s{sT0}, s{sTEAM}, 8")
    a(f"s_add_u32 s{sT0}, s{sT0}, {L_OB}")
    a("v_lshlrev_b32 v26, 2, v27")
    a(f"v_add_u32 v26, s{sT0}, v26")
    a("ds_read_b32 v2, v26")
    a(f"s_lshl_b32 s{sT0}, s{sTW}, 10")
    a(f"s_add_u32 s{sT0}, s{sT0}, {L_WO}")
    a(f"v_add_u32 v26, s{sT0}, v0")
    for r in range(4, 12): a(f"v_mov_b32 v{r}, 0")
    for qp in range(4):
        a(f"ds_read_b128 v[12:15], v26 offset:{(qp*2)*4096}")
        a(f"ds_read_b128 v[16:19], v26 offset:{(qp*2+1)*4096}")
        a("s_waitcnt lgkmcnt(0)")
        for d in range(8):
            a(f"v_dot2c_f32_bf16_dpp v{4+d}, v2, v{12+d} quad_perm:[{qp},{qp},{qp},{qp}] {DPP}")
    for k in range(4): a(f"v_permlane32_swap_b32 v{4+k}, v{8+k}")
    for k in range(4): a(f"v_add_f32 v{4+k}, v{4+k}, v{8+k}")
    for k in range(2): a(f"v_permlane16_swap_b32 v{4+k}, v{6+k}")
    for k in range(2): a(f"v_add_f32 v{4+k}, v{4+k}, v{6+k}")
    for r in (4, 8):
        for k in range(2): a(f"v_add_f32_dpp v{4+k}, v{4+k}, v{4+k} row_ror:{r} {DPP}")
    a("v_and_b32 v12, 3, v27")
    a("v_lshlrev_b32 v12, 10, v12")
    a("v_lshrrev_b32 v13, 5, v27")
    a("v_lshl_add_u32 v12, v13, 9, v12")
    a("v_bfe_u32 v13, v27, 4, 1")
    a("v_lshl_add_u32 v12, v13, 3, v12")
    a("v_and_b32 v13, 12, v27")
    a(f"s_lshl_b32 s{sT0}, s{sJ}, 14")
    a(f"s_lshl_b32 s{sT1}, s{sTW}, 12")
    a(f"s_add_u32 s{sT0}, s{sT0}, s{sT1}")
    a(f"s_lshl_b32 s{sT1}, s{sH}, 4")
    a(f"s_add_u32 s{sT0}, s{sT0}, s{sT1}")
    a(f"s_add_u32 s{sT0}, s{sT0}, s{sAREA}")
    a(f"s_add_u32 s{sT0}, s{sT0}, {O_YP}")
    a("v_cmp_eq_u32 vcc, 0, v13")
    a(f"s_and_saveexec_b64 s[{sEX}:{sEX+1}], vcc")
    a(f"buffer_store_dwordx2 v[4:5], v12, {ws}, s{sT0} offen sc1")
    a("s_mov_b64 exec, -1")
    stamp(a, 4)
    a(f"s_cmp_eq_u32 s{sLEAD}, 0")
    a(f"s_cbranch_scc1 {l_na1}")
    l_r1 = a.newlabel("res1"); l_rd = a.newlabel("resd")
    a("v_lshrrev_b32 v13, 4, v27")
    a(f"s_cmp_eq_u32 s{sTEAM}, 1")
    a(f"s_cbranch_scc1 {l_r1}")
    a(f"s_lshl_b32 s{sT0}, s{sSTEP}, 1")
    a(f"s_add_u32 s{sT0}, s{sT0}, s{sG}")
    a(f"s_lshl_b32 s{sT0}, s{sT0}, 10")
    a(f"s_lshl_b32 s{sT1}, s{sC}, 3")
    a(f"s_add_u32 s{sT0}, s{sT0}, s{sT1}")
    a("v_lshlrev_b32 v14, 1, v13")
    a(f"buffer_load_ushort v20, v14, s[{SRD_X}:{SRD_X+3}], s{sT0} offen")
    a("s_waitcnt vmcnt(0)")
    a("v_lshlrev_b32 v20, 16, v20")
    a(f"s_branch {l_rd}")
    a.label(l_r1)
    a("v_lshlrev_b32 v14, 2, v13")
    a(f"v_add_u32 v14, {L_XRES}, v14")
    a("ds_read_b32 v20, v14")
    a("s_waitcnt lgkmcnt(0)")
    a.label(l_rd)
    a(f"s_lshl_b32 s{sT0}, s{sC}, 9")
    a(f"s_add_u32 s{sT0}, s{sT0}, s{sAREA}")
    a(f"s_add_u32 s{sT0}, s{sT0}, {O_YP}")
    for r in range(4, 8): a(f"v_mov_b32 v{r}, 0")
    a(f"s_mov_b32 s{sEX}, -1"); a(f"s_mov_b32 s{sEX+1}, 0")
    a(f"s_mov_b64 exec, s[{sEX}:{sEX+1}]")
    poll(a, [f"buffer_load_dwordx4 v[4:7], v0, {ws}, s{sT0} offen sc1"], [4, 5, 6, 7], 24)
    a("s_mov_b64 exec, -1")
    wave_reduce4(a, 4, 5, 6, 7)
    bfround(a, 4, 8)
    a("v_add_f32 v20, v20, v4")
    bfround(a, 20, 8)
    bcast_publish(a, 20, O_X1)
    stamp(a, 5)
    a(f"s_cmp_ge_u32 s{sC}, {NZP}")
    a(f"s_cbranch_scc1 {l_na1}")
    a("v_lshlrev_b32 v26, 1, v0")
    a(f"s_lshl_b32 s{sT0}, s{sH}, 11")
    a(f"s_add_u32 s{sT0}, s{sT0}, s{sAREA}")
    a(f"s_add_u32 s{sT0}, s{sT0}, {O_X1}")
    poll(a, [f"buffer_load_dwordx4 v[2:5], v26, {ws}, s{sT0} offen sc1",
             f"buffer_load_dwordx4 v[6:9], v26, {ws}, s{sT0} offen offset:16 sc1"], list(range(2, 10)), 24)
    stamp(a, 6)
    layernorm(a, list(range(2, 10)), [10, 11, 12, 13], 14, 15, 16)
    a(f"s_lshl_b32 s{sT0}, s{sTEAM}, 10")
    a(f"s_add_u32 s{sT0}, s{sT0}, {L_XB}")
    a(f"v_add_u32 v26, s{sT0}, v0")
    a("ds_write_b128 v26, v[10:13]")
    a("s_waitcnt lgkmcnt(0)")
    a.label(l_na1)
    a("s_barrier")
    l_na2 = a.newlabel("na2"); l_nos2 = a.newlabel("nos2")
    a(f"s_cmp_eq_u32 s{sACT}, 0")
    a(f"s_cbranch_scc1 {l_na2}")
    a(f"s_cmp_ge_u32 s{sC}, {NZP}")
    a(f"s_cbranch_scc1 {l_nos2}")
    a(f"s_lshl_b32 s{sT0}, s{sTEAM}, 10")
    a(f"s_add_u32 s{sT0}, s{sT0}, {L_XB}")
    a(f"v_add_u32 v26, s{sT0}, v0")
    a("ds_read_b128 v[10:13], v26")
    acc = [2, 3, 4, 5, 6, 7, 8, 9, 14, 15, 16, 17]
    a(f"v_add_u32 v26, {L_W1}, v0")
    for ip in range(4):
        for q in range(3):
            a(f"ds_read_b128 v[22:25], v26 offset:{(3*ip+q)*1024}")
            a("s_waitcnt lgkmcnt(0)")
            for z in range(4):
                if ip == 0: a(f"v_dot2_f32_bf16 v{acc[4*q+z]}, v{22+z}, v{10+ip}, 0")
                else: a(f"v_dot2_f32_bf16 v{acc[4*q+z]}, v{22+z}, v{10+ip}, v{acc[4*q+z]}")
    for q in range(3):
        wave_reduce4(a, *acc[4*q:4*q+4])
    hs = [acc[0], acc[4], acc[8]]
    for q in range(3):
        h = hs[q]
        bfround(a, h, 22)
        a(f"v_mul_f32 v23, 0x{LOG2E ^ 0x80000000:x}, v{h}")
        a("v_exp_f32 v23, v23")
        a("v_add_f32 v23, 1.0, v23")
        a("v_rcp_f32 v23, v23")
        a(f"v_mul_f32 v{h}, v{h}, v23")
        bfround(a, h, 22)
    for q in range(3):
        for rho in range(4):
            a(f"v_readlane_b32 s{sHP+4*q+rho}, v{hs[q]}, {16*rho}")
    for k in range(6):
        a(f"s_pack_hh_b32_b16 s{sHP+k}, s{sHP+2*k}, s{sHP+2*k+1}")
    a(f"s_lshl_b32 s{sT0}, s{sTW}, 10")
    a(f"s_add_u32 s{sT0}, s{sT0}, {L_W2}")
    a(f"v_add_u32 v26, s{sT0}, v0")
    for n in range(3):
        a(f"ds_read_b128 {vr(6+4*n,4)}, v26 offset:{n*4096}")
    a("v_mov_b32 v2, 0"); a("v_mov_b32 v3, 0")
    a("s_waitcnt lgkmcnt(0)")
    for n in range(3):
        for z in range(2):
            a(f"v_dot2c_f32_bf16 v2, s{sHP+2*n+z}, v{6+4*n+2*z}")
            a(f"v_dot2c_f32_bf16 v3, s{sHP+2*n+z}, v{7+4*n+2*z}")
    a("v_lshrrev_b32 v26, 1, v27")
    a(f"v_mul_u32_u24 v26, {ZPS}, v26")
    a("v_and_b32 v25, 1, v27")
    a("v_lshl_add_u32 v26, v25, 3, v26")
    a(f"s_mul_i32 s{sT0}, s{sTW}, {32*ZPS}")
    a(f"s_lshl_b32 s{sT1}, s{sC}, 4")
    a(f"s_add_u32 s{sT0}, s{sT0}, s{sT1}")
    a(f"s_add_u32 s{sT0}, s{sT0}, s{sAREA}")
    a(f"s_add_u32 s{sT0}, s{sT0}, {O_ZP}")
    a(f"buffer_store_dwordx2 v[2:3], v26, {ws}, s{sT0} offen sc1")
    stamp(a, 7)
    a.label(l_nos2)
    a(f"s_cmp_eq_u32 s{sLEAD}, 0")
    a(f"s_cbranch_scc1 {l_na2}")
    a("v_min_u32 v13, 50, v27")
    a("v_lshlrev_b32 v13, 4, v13")
    a(f"v_add_u32 v13, {64*16}, v13")
    a(f"s_mul_i32 s{sT0}, s{sC}, {ZPS}")
    a(f"s_add_u32 s{sT0}, s{sT0}, s{sAREA}")
    a(f"s_add_u32 s{sT0}, s{sT0}, {O_ZP}")
    poll(a, [f"buffer_load_dwordx4 v[4:7], v0, {ws}, s{sT0} offen sc1",
             f"buffer_load_dwordx4 v[8:11], v13, {ws}, s{sT0} offen sc1"], list(range(4, 12)), 24)
    a("v_cmp_gt_u32 vcc, 51, v27")
    for r in range(4):
        a(f"v_cndmask_b32 v{8+r}, 0, v{8+r}, vcc")
    for r in range(4):
        a(f"v_add_f32 v{4+r}, v{4+r}, v{8+r}")
    wave_reduce4(a, 4, 5, 6, 7)
    bfround(a, 4, 8)
    a("v_add_f32 v20, v20, v4")
    bfround(a, 20, 8)
    l_o = a.newlabel("outw")
    a(f"s_cmp_eq_u32 s{sTEAM}, 1")
    a(f"s_cbranch_scc1 {l_o}")
    bcast_publish(a, 20, O_X2)
    a("v_lshrrev_b32 v13, 4, v27")
    a("v_lshlrev_b32 v13, 2, v13")
    a(f"v_add_u32 v13, {L_XRES}, v13")
    a("ds_write_b32 v13, v20")
    a("s_waitcnt lgkmcnt(0)")
    stamp(a, 8)
    a(f"s_branch {l_na2}")
    a.label(l_o)
    a("v_lshrrev_b32 v13, 4, v27")
    a("v_and_b32 v14, 15, v27")
    a("v_lshlrev_b32 v13, 1, v13")
    a(f"s_lshl_b32 s{sT0}, s{sSTEP}, 1")
    a(f"s_add_u32 s{sT0}, s{sT0}, s{sG}")
    a(f"s_sub_u32 s{sT0}, s{sT0}, 2")
    a(f"s_lshl_b32 s{sT0}, s{sT0}, 10")
    a(f"s_lshl_b32 s{sT1}, s{sC}, 3")
    a(f"s_add_u32 s{sT0}, s{sT0}, s{sT1}")
    a("v_cmp_eq_u32 vcc, 0, v14")
    a(f"s_and_saveexec_b64 s[{sEX}:{sEX+1}], vcc")
    a(f"buffer_store_short_d16_hi v20, v13, s[{SRD_OUT}:{SRD_OUT+3}], s{sT0} offen")
    a("s_mov_b64 exec, -1")
    stamp(a, 8)
    a.label(l_na2)

def bcast_publish(a, val, off):
    ws = f"s[{SRD_WS}:{SRD_WS+3}]"
    for rho in range(4):
        a(f"v_readlane_b32 s{sHP+rho}, v{val}, {16*rho}")
    for rho in range(4):
        a(f"v_mov_b32 v{4+rho}, s{sHP+rho}")
    a("v_lshlrev_b32 v8, 7, v0")
    a(f"s_lshl_b32 s{sT0}, s{sC}, 4")
    a(f"s_add_u32 s{sT0}, s{sT0}, s{sAREA}")
    a(f"s_add_u32 s{sT0}, s{sT0}, {off}")
    a(f"s_mov_b32 s{sEX}, -1"); a(f"s_mov_b32 s{sEX+1}, 0")
    a(f"s_mov_b64 exec, s[{sEX}:{sEX+1}]")
    a(f"buffer_store_dwordx4 v[4:7], v8, {ws}, s{sT0} offen sc1")
    a("s_mov_b64 exec, -1")

def stage_q(a):
    ws = f"s[{SRD_WS}:{SRD_WS+3}]"
    l0 = a.newlabel("nos3a")
    a(f"s_cmp_lg_u32 s{sW}, 0")
    a(f"s_cbranch_scc1 {l0}")
    a("v_lshlrev_b32 v26, 1, v0")
    a(f"s_lshl_b32 s{sT0}, s{sH}, 11")
    a(f"s_add_u32 s{sT0}, s{sT0}, s{sAREA0}")
    a(f"s_add_u32 s{sT0}, s{sT0}, {O_X2}")
    poll(a, [f"buffer_load_dwordx4 v[2:5], v26, {ws}, s{sT0} offen sc1",
             f"buffer_load_dwordx4 v[6:9], v26, {ws}, s{sT0} offen offset:16 sc1"], list(range(2, 10)), 24)
    stamp(a, 9)
    layernorm(a, list(range(2, 10)), [10, 11, 12, 13], 14, 15, 16)
    a(f"v_add_u32 v26, {L_XB}, v0")
    a("ds_write_b128 v26, v[10:13]")
    a("s_waitcnt lgkmcnt(0)")
    a.label(l0)
    a("s_barrier")
    a(f"v_add_u32 v26, {L_XB}, v0")
    a("ds_read_b128 v[10:13], v26")
    a(f"s_lshl_b32 s{sT0}, s{sW}, 10")
    a(f"s_add_u32 s{sT0}, s{sT0}, {L_WQ}")
    a(f"v_add_u32 v26, s{sT0}, v0")
    for p in range(2):
        a(f"ds_read_b128 v[14:17], v26 offset:{(2*p)*8192}")
        a(f"ds_read_b128 v[18:21], v26 offset:{(2*p+1)*8192}")
        a("s_waitcnt lgkmcnt(0)")
        for u in range(2):
            for c in range(4):
                if p == 0 and u == 0: a(f"v_dot2_f32_bf16 v{2+c}, v{14+c}, v10, 0")
                else: a(f"v_dot2_f32_bf16 v{2+c}, v{14+4*u+c}, v{10+2*p+u}, v{2+c}")
    wave_reduce4(a, 2, 3, 4, 5)
    bfround(a, 2, 6)
    for rho in range(4):
        a(f"v_readlane_b32 s{sHP+rho}, v2, {16*rho}")
    a(f"s_pack_hh_b32_b16 s{sHP}, s{sHP}, s{sHP+1}")
    a(f"s_pack_hh_b32_b16 s{sHP+1}, s{sHP+2}, s{sHP+3}")
    a(f"v_mov_b32 v2, s{sHP}")
    a(f"v_mov_b32 v3, s{sHP+1}")
    a("v_mov_b32 v4, 0")
    a(f"s_lshl_b32 s{sT0}, s{sC}, 6")
    a(f"s_lshl_b32 s{sT1}, s{sW}, 3")
    a(f"s_add_u32 s{sT0}, s{sT0}, s{sT1}")
    a(f"s_add_u32 s{sT0}, s{sT0}, s{sAREA0}")
    a(f"s_add_u32 s{sT0}, s{sT0}, {O_Q2}")
    a("v_cmp_eq_u32 vcc, 0, v0")
    a(f"s_and_saveexec_b64 s[{sEX}:{sEX+1}], vcc")
    a(f"buffer_store_dwordx2 v[2:3], v4, {ws}, s{sT0} offen sc1")
    a("s_mov_b64 exec, -1")
    l1 = a.newlabel("noq2")
    a("v_and_b32 v6, 0xf0, v0")
    a(f"s_cmp_lg_u32 s{sW}, 0")
    a(f"s_cbranch_scc1 {l1}")
    a(f"s_lshl_b32 s{sT0}, s{sH}, 8")
    a(f"s_add_u32 s{sT0}, s{sT0}, s{sAREA0}")
    a(f"s_add_u32 s{sT0}, s{sT0}, {O_Q2}")
    poll(a, [f"buffer_load_dwordx4 {vr(Q[0],4)}, v6, {ws}, s{sT0} offen sc1"], Q, 24)
    a(f"v_add_u32 v7, {L_QB}, v6")
    a(f"ds_write_b128 v7, {vr(Q[0],4)}")
    a("s_waitcnt lgkmcnt(0)")
    a.label(l1)
    a("s_barrier")
    a(f"v_add_u32 v7, {L_QB}, v6")
    a(f"ds_read_b128 {vr(Q[0],4)}, v7")
    a("s_waitcnt lgkmcnt(0)")

if __name__ == "__main__":
    out = header() + gen_main()
    path = sys.argv[1] if len(sys.argv) > 1 else f"cdna_kernels/{NAME}.s"
    open(path, "w").write(out)
```

```python
import sys, os
from asmdsl import Asm
PROFILE = int(os.environ.get("PROFILE", "0"))
WS_PROF = 0x2000000

NAME = "interleave_layers__gqa_block_cached__dense_activation_silu__decode"
LOG2E = 0x3fb8aa3b
SCALE = 0x3db504f3
EPS = 0x3727c5ac
INV512 = 0x3b000000

WS_Q1 = 0x0
WS_AREA = 0x100000
AREA = 0xA0000
O_REC, REC_STRIDE = 0x0, 576
O_YPF = 0x12000
O_X1L = 0x32000
O_ZPL = 0x34000
O_ZPF = 0x74000
O_X2L = 0x94000
O_Q2 = 0x96000
NZP = 115
NFILL = 13

L_V = 0
L_WO = 57344
L_WQ = 90112
L_W1 = 122880
L_W2 = 135168
L_SC = 147456
L_EP0 = L_SC
L_EP1 = L_SC + 4608
L_XRES = L_SC + 9216
L_OB = L_SC + 9472
L_XB = L_SC + 11520
L_QB = L_SC + 13568
L_Q1 = L_SC + 13824
L_X1O = L_SC + 14848
L_ROLE = L_SC + 15104

def header():
    return f"""; generated by dev/gen.py
; @launch grid=(256,1,1) block=(512,1,1) lds=163840
.amdgcn_target "amdgcn-amd-amdhsa--gfx950"
.text
"""

def kd(name, vgpr, sgpr):
    return f""".section .rodata,"a"
.p2align 6
.amdhsa_kernel {name}
  .amdhsa_next_free_vgpr {vgpr}
  .amdhsa_next_free_sgpr {sgpr}
  .amdhsa_accum_offset {(vgpr+3)//4*4}
  .amdhsa_group_segment_fixed_size 0
  .amdhsa_kernarg_size 88
  .amdhsa_user_sgpr_count 2
  .amdhsa_user_sgpr_kernarg_segment_ptr 1
  .amdhsa_system_sgpr_workgroup_id_x 1
.end_amdhsa_kernel
.text
"""

DPP = "row_mask:0xf bank_mask:0xf"

def v(n): return f"v{n}"
def vr(n, k): return f"v[{n}:{n+k-1}]"

def allreduce_add(a, x, t):
    for r in (8, 4, 2, 1):
        a(f"v_add_f32_dpp v{x}, v{x}, v{x} row_ror:{r} {DPP}")
    for sw in (16, 32):
        a(f"v_mov_b32 v{t}, v{x}")
        a(f"v_permlane{sw}_swap_b32 v{x}, v{t}")
        a(f"v_add_f32 v{x}, v{x}, v{t}")

def wave_reduce4(a, r0, r1, r2, r3):
    a(f"v_permlane32_swap_b32 v{r0}, v{r2}")
    a(f"v_permlane32_swap_b32 v{r1}, v{r3}")
    a(f"v_add_f32 v{r0}, v{r0}, v{r2}")
    a(f"v_add_f32 v{r1}, v{r1}, v{r3}")
    a(f"v_permlane16_swap_b32 v{r0}, v{r1}")
    a(f"v_add_f32 v{r0}, v{r0}, v{r1}")
    for r in (8, 4, 2, 1):
        a(f"v_add_f32_dpp v{r0}, v{r0}, v{r0} row_ror:{r} {DPP}")

def bfround(a, x, t):
    a(f"v_cvt_pk_bf16_f32 v{t}, v{x}, v{x}")
    a(f"v_lshlrev_b32 v{x}, 16, v{t}")

def bfround2(a, x, y, t):
    a(f"v_cvt_pk_bf16_f32 v{t}, v{x}, v{y}")
    a(f"v_lshlrev_b32 v{x}, 16, v{t}")
    a(f"v_and_b32 v{y}, 0xffff0000, v{t}")

def layernorm(a, x, xp, t0, t1, t2):
    a(f"v_add_f32 v{t0}, v{x[0]}, v{x[1]}")
    for i in range(2, 8):
        a(f"v_add_f32 v{t0}, v{t0}, v{x[i]}")
    allreduce_add(a, t0, t1)
    a(f"v_mul_f32 v{t0}, 0x{INV512:x}, v{t0}")
    a(f"v_sub_f32 v{t2}, v{x[0]}, v{t0}")
    a(f"v_mul_f32 v{t1}, v{t2}, v{t2}")
    for i in range(1, 8):
        a(f"v_sub_f32 v{t2}, v{x[i]}, v{t0}")
        a(f"v_fma_f32 v{t1}, v{t2}, v{t2}, v{t1}")
    allreduce_add(a, t1, t2)
    a(f"v_mul_f32 v{t1}, 0x{INV512:x}, v{t1}")
    bfround2(a, t0, t1, t2)
    a(f"v_add_f32 v{t1}, 0x{EPS:x}, v{t1}")
    bfround(a, t1, t2)
    a(f"v_sqrt_f32 v{t1}, v{t1}")
    bfround(a, t1, t2)
    a(f"v_rcp_f32 v{t1}, v{t1}")
    for p in range(4):
        x0, x1 = x[2*p], x[2*p+1]
        a(f"v_sub_f32 v{x0}, v{x0}, v{t0}")
        a(f"v_sub_f32 v{x1}, v{x1}, v{t0}")
        bfround2(a, x0, x1, t2)
        a(f"v_mul_f32 v{x0}, v{x0}, v{t1}")
        a(f"v_mul_f32 v{x1}, v{x1}, v{t1}")
        a(f"v_cvt_pk_bf16_f32 v{xp[p]}, v{x0}, v{x1}")

def srd(a, d, pair, nbytes):
    a(f"s_mov_b32 s{d}, s{pair}")
    a(f"s_and_b32 s{d+1}, s{pair+1}, 0xffff")
    a(f"s_mov_b32 s{d+2}, 0x{nbytes:x}")
    a(f"s_mov_b32 s{d+3}, 0x00020000")

def gen_init():
    a = Asm()
    a.raw(".globl init_kernel\n.p2align 8\n.type init_kernel,@function\ninit_kernel:")
    a("s_cmp_ge_u32 s2, 256")
    a("s_cbranch_scc1 init_end")
    a("s_load_dwordx2 s[4:5], s[0:1], 0")
    a("s_load_dwordx2 s[6:7], s[0:1], 24")
    a("s_load_dwordx2 s[8:9], s[0:1], 80")
    a("s_waitcnt lgkmcnt(0)")
    srd(a, 12, 4, 8*512*2)
    srd(a, 16, 6, 512*4096*2)
    srd(a, 20, 8, 1 << 30)
    if PROFILE:
        a("s_memrealtime s[34:35]")
    a("v_and_b32 v1, 63, v0")
    a("v_lshrrev_b32 v2, 6, v0")
    a("v_readfirstlane_b32 s24, v2")
    a("v_lshlrev_b32 v3, 4, v1")
    for b in range(8):
        a(f"buffer_load_dwordx4 {vr(8+4*b,4)}, v3, s[12:15], 0 offen offset:{b*1024}" if b < 4 else
          f"buffer_load_dwordx4 {vr(8+4*b,4)}, v4, s[12:15], 0 offen offset:{(b-4)*1024}")
        if b == 0:
            a("v_add_u32 v4, 0x1000, v3")
    a("s_lshl_b32 s25, s2, 5")
    a("s_lshl_b32 s26, s24, 3")
    a("s_add_u32 s25, s25, s26")
    a("v_lshlrev_b32 v5, 16, v1")
    for i in range(8):
        a(f"s_add_u32 s26, s25, {i*8192}")
        a(f"buffer_load_dwordx2 {vr(40+2*i,2)}, v5, s[16:19], s26 offen")
    a("v_mov_b32 v60, -1"); a("v_mov_b32 v61, -1"); a("v_mov_b32 v62, -1"); a("v_mov_b32 v63, -1")
    a("v_lshlrev_b32 v6, 4, v0")
    a(f"s_mul_i32 s27, s2, {NFILL*4096}")
    a(f"s_add_u32 s27, s27, 0x{WS_AREA:x}")
    for i in range(NFILL):
        a(f"buffer_store_dwordx4 v[60:63], v6, s[20:23], s27 offen")
        if i < NFILL-1: a("s_add_u32 s27, s27, 0x1000")
    a(f"s_waitcnt vmcnt({8+NFILL})")
    for b in range(8):
        base = 8 + 4*b
        xs = list(range(64, 72))
        for p in range(4):
            a(f"v_lshlrev_b32 v{xs[2*p]}, 16, v{base+p}")
            a(f"v_and_b32 v{xs[2*p+1]}, 0xffff0000, v{base+p}")
        layernorm(a, xs, [base+p for p in range(4)], 72, 73, 74)
    a(f"s_waitcnt vmcnt({NFILL})")
    a("s_mov_b32 s28, 0x05040100"); a("s_mov_b32 s29, 0x07060302")
    for p in range(4):
        r = 40 + 4*p
        a(f"v_perm_b32 v{76+4*p}, v{r+2}, v{r}, s28")
        a(f"v_perm_b32 v{77+4*p}, v{r+2}, v{r}, s29")
        a(f"v_perm_b32 v{78+4*p}, v{r+3}, v{r+1}, s28")
        a(f"v_perm_b32 v{79+4*p}, v{r+3}, v{r+1}, s29")
    a("v_lshrrev_b32 v5, 4, v1")
    a("v_lshlrev_b32 v5, 1, v5")
    a("v_and_b32 v6, 15, v1")
    a("v_cmp_eq_u32 vcc, 0, v6")
    a("s_mov_b64 s[30:31], vcc")
    for b in range(8):
        base = 8 + 4*b
        acc = [64, 65, 66, 67]
        for c in range(4):
            a(f"v_dot2_f32_bf16 v{acc[c]}, v{76+c}, v{base}, 0")
        for p in range(1, 4):
            for c in range(4):
                a(f"v_dot2_f32_bf16 v{acc[c]}, v{76+4*p+c}, v{base+p}, v{acc[c]}")
        wave_reduce4(a, *acc)
        a(f"v_cvt_pk_bf16_f32 v68, v64, v64")
        a(f"s_add_u32 s26, s25, {WS_Q1 + b*8192}")
        a("s_mov_b64 exec, s[30:31]")
        a(f"buffer_store_short v68, v5, s[20:23], s26 offen")
        a("s_mov_b64 exec, -1")
    if PROFILE:
        a("s_memrealtime s[36:37]")
        a("s_waitcnt lgkmcnt(0)")
        a("v_mov_b32 v8, s34"); a("v_mov_b32 v9, s35"); a("v_mov_b32 v10, s36"); a("v_mov_b32 v11, s37")
        a("s_lshl_b32 s26, s2, 4")
        a(f"s_add_u32 s26, s26, {WS_PROF + 0x140000}")
        a("s_mov_b64 exec, 1")
        a("buffer_store_dwordx4 v[8:11], off, s[20:23], s26")
    a.raw("init_end:")
    a("s_endpgm")
    return a.text() + kd("init_kernel", 96, 40)

KB = 28
VB = 156
NVREG = 25
Q = [2, 3, 4, 5]
ACC = list(range(6, 14))
M, L = 14, 15
S = list(range(16, 24))
PL = [24, 25]; PH = [26, 27]

sG, sC, sH, sJ, sW, sTW, sTEAM, sSTEP, sAREA, sAREA0, sKV, sTO = 20, 21, 22, 23, 24, 25, 26, 27, 28, 29, 30, 31
sT0, sT1, sT2, sT3 = 32, 33, 34, 35
sEX = 36
sEX2 = 38
sHP = 40
sVL = 52
sAREAN = 53
SRD_K, SRD_V, SRD_WS, SRD_X, SRD_OUT, SRD_W, SRD_DBG = 4, 8, 12, 16, 56, 60, 92
sQO, sKV0 = 38, 39
sX, sK = 96, 97

def stamp(a, idx, r=22):
    if not PROFILE: return
    a("s_memrealtime s[86:87]")
    a(f"s_lshr_b32 s88, s{sC}, 3")
    a(f"s_lshl_b32 s88, s88, 4")
    a(f"s_lshl_b32 s89, s{sG}, 3")
    a(f"s_or_b32 s88, s88, s89")
    a(f"s_and_b32 s89, s{sC}, 7")
    a(f"s_or_b32 s88, s88, s89")
    a(f"s_lshl_b32 s88, s88, 3")
    a(f"s_add_u32 s88, s88, s{sW}")
    a(f"s_mul_i32 s88, s88, 5")
    a(f"s_add_u32 s88, s88, s{sSTEP}")
    a(f"s_lshl_b32 s88, s88, 7")
    a(f"s_add_u32 s88, s88, {WS_PROF + idx*8}")
    a("s_waitcnt lgkmcnt(0)")
    a("s_mov_b64 s[90:91], exec")
    a("s_mov_b64 exec, 1")
    a(f"v_mov_b32 v{r}, s86")
    a(f"v_mov_b32 v{r+1}, s87")
    a(f"buffer_store_dwordx2 v[{r}:{r+1}], off, s[{SRD_WS}:{SRD_WS+3}], s88")
    a("s_mov_b64 exec, s[90:91]")

def poll(a, loads, regs, tmp):
    lp = a.newlabel("poll"); dn = a.newlabel("polld")
    a.label(lp)
    for l in loads: a(l)
    a("s_waitcnt vmcnt(0)")
    rs = list(regs)
    if len(rs) == 1:
        a(f"v_cmp_eq_u32 vcc, -1, v{rs[0]}")
    else:
        if len(rs) == 2:
            a(f"v_max_u32 v{tmp}, v{rs[0]}, v{rs[1]}"); rs = []
        else:
            a(f"v_max3_u32 v{tmp}, v{rs[0]}, v{rs[1]}, v{rs[2]}"); rs = rs[3:]
        while rs:
            if len(rs) >= 2:
                a(f"v_max3_u32 v{tmp}, v{tmp}, v{rs[0]}, v{rs[1]}"); rs = rs[2:]
            else:
                a(f"v_max_u32 v{tmp}, v{tmp}, v{rs[0]}"); rs = rs[1:]
        a(f"v_cmp_eq_u32 vcc, -1, v{tmp}")
    a(f"s_cbranch_vccz {dn}")
    a(f"s_sleep {SLEEP}")
    a(f"s_sub_u32 s{sTO}, s{sTO}, 1")
    a(f"s_cbranch_scc0 {lp}")
    a("s_branch main_bail")
    a.label(dn)

DEPTH = int(os.environ.get("DEPTH", "64"))
RG = int(os.environ.get("RG", "6"))
SLEEP = int(os.environ.get("SLEEP", "4"))
def issue_group(a, gi):
    ch, sub = gi // 4, gi % 4
    half = sub & 1
    a(f"s_add_u32 s{sT2}, s{sKV}, {(8*ch+4*half)*1024}")
    for i in range(4):
        n = 8*ch + 4*half + i
        if sub < 2:
            a(f"buffer_load_dwordx4 {vr(KB+4*n,4)}, v0, s[{SRD_K}:{SRD_K+3}], s{sT2} offen offset:{i*1024} nt")
        elif n < NVREG:
            a(f"buffer_load_dwordx4 {vr(VB+4*n,4)}, v0, s[{SRD_V}:{SRD_V+3}], s{sT2} offen offset:{i*1024} nt")
        else:
            a(f"s_add_u32 s{sT3}, s{sVL}, {(n-NVREG)*1024}")
            a(f"s_mov_b32 m0, s{sT3}")
            a(f"s_add_u32 s{sT3}, s{sKV}, {n*1024}")
            a(f"buffer_load_dwordx4 v0, s[{SRD_V}:{SRD_V+3}], s{sT3} offen nt lds")

def need_groups(a, st, upto):
    while st[1] < upto:
        st[1] += 1
    a(f"s_waitcnt vmcnt({4*(16-st[1])})")

def attention(a, first, refill=False):
    st = [16, 0]
    for r in ACC: a(f"v_mov_b32 v{r}, 0")
    a(f"v_mov_b32 v{M}, 0xff7fffff")
    a(f"v_mov_b32 v{L}, 0")
    for ch in range(4):
        if first: need_groups(a, st, 4*ch + 2)
        for r in range(4):
            for i in range(8):
                k = KB + 4*(8*ch + i) + r
                if r == 0: a(f"v_dot2_f32_bf16 v{S[i]}, v{k}, v{Q[0]}, 0")
                else: a(f"v_dot2_f32_bf16 v{S[i]}, v{k}, v{Q[r]}, v{S[i]}")
        if refill and 4*ch < RG:
            lr = a.newlabel("norefk")
            a(f"s_cbranch_scc1 {lr}") if False else None
            a(f"s_cmp_eq_u32 s{sSTEP}, 3")
            a(f"s_cbranch_scc1 {lr}")
            issue_group(a, 4*ch); issue_group(a, 4*ch+1)
            a.label(lr)
        for i in range(4):
            a(f"v_add_f32_dpp v{S[i]}, v{S[i]}, v{S[i]} row_mirror row_mask:0xf bank_mask:0x3")
            a(f"v_add_f32_dpp v{S[i]}, v{S[i+4]}, v{S[i+4]} row_mirror row_mask:0xf bank_mask:0xc")
        for i in range(2):
            a(f"v_add_f32_dpp v{S[i]}, v{S[i]}, v{S[i]} row_half_mirror row_mask:0xf bank_mask:0x5")
            a(f"v_add_f32_dpp v{S[i]}, v{S[i+2]}, v{S[i+2]} row_half_mirror row_mask:0xf bank_mask:0xa")
        for e in range(2):
            a(f"v_add_f32_dpp v{S[e]}, v{S[e]}, v{S[e]} quad_perm:[2,3,0,1] {DPP}")
        for e in range(2):
            a(f"v_add_f32_dpp v{S[e]}, v{S[e]}, v{S[e]} quad_perm:[1,0,3,2] {DPP}")
        t0, t1, t2 = S[2], S[3], S[4]
        bfround2(a, S[0], S[1], t0)
        a(f"v_mul_f32 v{S[0]}, 0x{SCALE:x}, v{S[0]}")
        a(f"v_mul_f32 v{S[1]}, 0x{SCALE:x}, v{S[1]}")
        bfround2(a, S[0], S[1], t0)
        a(f"v_max_f32 v{t0}, v{S[0]}, v{S[1]}")
        a(f"v_max_f32_dpp v{t0}, v{t0}, v{t0} row_half_mirror {DPP}")
        a(f"v_max_f32_dpp v{t0}, v{t0}, v{t0} row_mirror {DPP}")
        a(f"v_max_f32 v{t0}, v{t0}, v{M}")
        a(f"v_sub_f32 v{t1}, v{M}, v{t0}")
        a(f"v_sub_f32 v{S[0]}, v{S[0]}, v{t0}")
        a(f"v_sub_f32 v{S[1]}, v{S[1]}, v{t0}")
        a(f"v_mul_f32 v{t1}, 0x{LOG2E:x}, v{t1}")
        a(f"v_mul_f32 v{S[0]}, 0x{LOG2E:x}, v{S[0]}")
        a(f"v_mul_f32 v{S[1]}, 0x{LOG2E:x}, v{S[1]}")
        a(f"v_exp_f32 v{t1}, v{t1}")
        a(f"v_exp_f32 v{S[0]}, v{S[0]}")
        a(f"v_exp_f32 v{S[1]}, v{S[1]}")
        a(f"v_mov_b32 v{M}, v{t0}")
        a(f"v_cvt_pk_bf16_f32 v{PL[0]}, v{S[0]}, 0")
        a(f"v_cvt_pk_bf16_f32 v{PL[1]}, v{S[1]}, 0")
        a(f"v_fma_f32 v{L}, v{L}, v{t1}, v{S[0]}")
        a(f"v_lshlrev_b32 v{PH[0]}, 16, v{PL[0]}")
        a(f"v_lshlrev_b32 v{PH[1]}, 16, v{PL[1]}")
        a(f"v_add_f32 v{L}, v{L}, v{S[1]}")
        for r in ACC: a(f"v_mul_f32 v{r}, v{r}, v{t1}")
        if first: need_groups(a, st, 4*ch + 4)
        for i in range(8):
            vi = 8*ch + i
            e = i & 1
            src = 8*(i >> 2) + 4*((i >> 1) & 1)
            if vi < NVREG:
                vb = VB + 4*vi
            else:
                vb = S[2] + 4*((vi - NVREG) & 0)
                a(f"ds_read_b128 {vr(S[2],4)}, v1 offset:{(vi-NVREG)*1024}")
                a("s_waitcnt lgkmcnt(0)")
            for r in range(4):
                a(f"v_dot2c_f32_bf16_dpp v{ACC[2*r]}, v{PL[e]}, v{vb+r} row_newbcast:{src} {DPP}")
                a(f"v_dot2c_f32_bf16_dpp v{ACC[2*r+1]}, v{PH[e]}, v{vb+r} row_newbcast:{src} {DPP}")
        if refill and 4*ch+2 < RG:
            lr = a.newlabel("norefv")
            a(f"s_cmp_eq_u32 s{sSTEP}, 3")
            a(f"s_cbranch_scc1 {lr}")
            issue_group(a, 4*ch+2); issue_group(a, 4*ch+3)
            a.label(lr)


def lane_id(a, r):
    a(f"v_mbcnt_lo_u32_b32 v{r}, -1, 0")
    a(f"v_mbcnt_hi_u32_b32 v{r}, -1, v{r}")

def epilogue(a, lscr, s_area):
    t0, t1, t2, t3 = S[0], S[1], S[2], S[3]
    a(f"v_mov_b32 v{t0}, v{M}")
    a(f"v_mov_b32 v{t1}, v{M}")
    a(f"v_permlane16_swap_b32 v{t0}, v{t1}")
    a(f"v_max_f32 v{t0}, v{t0}, v{t1}")
    a(f"v_mov_b32 v{t1}, v{t0}")
    a(f"v_permlane32_swap_b32 v{t0}, v{t1}")
    a(f"v_max_f32 v{t0}, v{t0}, v{t1}")
    a(f"v_sub_f32 v{t1}, v{M}, v{t0}")
    a(f"v_mul_f32 v{t1}, 0x{LOG2E:x}, v{t1}")
    a(f"v_exp_f32 v{t1}, v{t1}")
    a(f"v_mul_f32 v{L}, v{L}, v{t1}")
    for r in ACC: a(f"v_mul_f32 v{r}, v{r}, v{t1}")
    a(f"v_add_f32_dpp v{L}, v{L}, v{L} row_half_mirror {DPP}")
    a(f"v_add_f32_dpp v{L}, v{L}, v{L} row_mirror {DPP}")
    for sw in (16, 32):
        a(f"v_mov_b32 v{t1}, v{L}")
        a(f"v_permlane{sw}_swap_b32 v{L}, v{t1}")
        a(f"v_add_f32 v{L}, v{L}, v{t1}")
    for k in range(4):
        a(f"v_permlane32_swap_b32 v{ACC[k]}, v{ACC[k+4]}")
    for k in range(4):
        a(f"v_add_f32 v{ACC[k]}, v{ACC[k]}, v{ACC[k+4]}")
    for k in range(2):
        a(f"v_permlane16_swap_b32 v{ACC[k]}, v{ACC[k+2]}")
    for k in range(2):
        a(f"v_add_f32 v{ACC[k]}, v{ACC[k]}, v{ACC[k+2]}")
    lane_id(a, t2)
    a(f"v_and_b32 v{t3}, 15, v{t2}")
    a(f"v_lshlrev_b32 v{t3}, 5, v{t3}")
    a(f"v_lshrrev_b32 v{t1}, 4, v{t2}")
    a(f"v_lshl_add_u32 v{t3}, v{t1}, 3, v{t3}")
    a(f"s_lshl_b32 s{sT0}, s{sW}, 9")
    a(f"s_add_u32 s{sT0}, s{sT0}, {lscr}")
    a(f"v_add_u32 v{t3}, s{sT0}, v{t3}")
    a(f"ds_write_b64 v{t3}, {vr(ACC[0],2)}")
    a(f"v_mov_b32 v{ACC[2]}, v{t0}")
    a(f"v_mov_b32 v{ACC[3]}, v{L}")
    a(f"s_lshl_b32 s{sT0}, s{sW}, 3")
    a(f"s_add_u32 s{sT0}, s{sT0}, {lscr + 4096}")
    a(f"v_mov_b32 v{t3}, s{sT0}")
    a(f"ds_write_b64 v{t3}, {vr(ACC[2],2)}")
    a("s_waitcnt lgkmcnt(0)")
    a("s_barrier")
    skip = a.newlabel("ep_skip")
    a(f"s_cmp_ge_u32 s{sW}, 2")
    a(f"s_cbranch_scc1 {skip}")
    lane_id(a, 26)
    a(f"s_lshl_b32 s{sT0}, s{sW}, 8")
    a(f"s_add_u32 s{sT0}, s{sT0}, {lscr}")
    a(f"v_lshlrev_b32 v26, 2, v26")
    a(f"v_add_u32 v26, s{sT0}, v26")
    a(f"v_mov_b32 v27, {lscr + 4096}")
    for w in range(8):
        a(f"ds_read_b32 v{2+w}, v26 offset:{w*512}")
    for w in range(4):
        a(f"ds_read_b128 {vr(10+4*w,4)}, v27 offset:{w*16}")
    a("s_waitcnt lgkmcnt(0)")
    a("v_max3_f32 v26, v10, v12, v14")
    a("v_max3_f32 v26, v26, v16, v18")
    a("v_max3_f32 v26, v26, v20, v22")
    a("v_max_f32 v26, v26, v24")
    for w in range(8):
        a(f"v_sub_f32 v{10+2*w}, v{10+2*w}, v26")
    for w in range(8):
        a(f"v_mul_f32 v{10+2*w}, 0x{LOG2E:x}, v{10+2*w}")
    for w in range(8):
        a(f"v_exp_f32 v{10+2*w}, v{10+2*w}")
    a("v_mul_f32 v2, v2, v10")
    a("v_mul_f32 v27, v11, v10")
    for w in range(1, 8):
        a(f"v_fma_f32 v2, v{2+w}, v{10+2*w}, v2")
        a(f"v_fma_f32 v27, v{11+2*w}, v{10+2*w}, v27")
    lane_id(a, 3)
    a("v_lshlrev_b32 v4, 2, v3")
    a(f"s_mul_i32 s{sT0}, s{sC}, {REC_STRIDE}")
    a(f"s_add_u32 s{sT0}, s{sT0}, s{s_area}")
    a(f"s_lshl_b32 s{sT1}, s{sW}, 8")
    a(f"s_add_u32 s{sT1}, s{sT1}, s{sT0}")
    a(f"buffer_store_dword v2, v4, s[{SRD_WS}:{SRD_WS+3}], s{sT1} offen offset:{O_REC}")
    a(f"s_cmp_lg_u32 s{sW}, 0")
    a(f"s_cbranch_scc1 {skip}")
    a("v_cmp_eq_u32 vcc, 0, v3")
    a(f"s_and_saveexec_b64 s[{sEX}:{sEX+1}], vcc")
    a(f"buffer_store_dwordx2 v[26:27], v4, s[{SRD_WS}:{SRD_WS+3}], s{sT0} offen offset:{O_REC+512}")
    a(f"s_mov_b64 exec, -1")
    a.label(skip)

SG_WO, SG_WQ, SG_W12 = 124, 140, 16
def stage_loads(a):
    srd(a, SRD_W, 74, 4096*512*2)
    a("v_lshrrev_b32 v4, 2, v3")
    a("v_lshlrev_b32 v4, 11, v4")
    a("v_and_b32 v5, 3, v3")
    a("v_lshl_add_u32 v4, v5, 4, v4")
    a(f"s_lshl_b32 s{sT0}, s{sX}, 19")
    a(f"s_lshl_b32 s{sT1}, s{sK}, 6")
    a(f"s_add_u32 s{sT0}, s{sT0}, s{sT1}")
    a(f"s_lshl_b32 s{sT1}, s{sW}, 16")
    a(f"s_add_u32 s{sT0}, s{sT0}, s{sT1}")
    for t in range(2):
        for r in range(2):
            a(f"buffer_load_dwordx4 {vr(SG_WO+8*t+4*r,4)}, v4, s[{SRD_W}:{SRD_W+3}], s{sT0} offen offset:{r*1024}")
        if t == 0: a(f"s_add_u32 s{sT0}, s{sT0}, {16*2*1024}")
    srd(a, SRD_W, 72, 512*4096*2)
    a("v_lshrrev_b32 v4, 2, v3")
    a("v_lshlrev_b32 v4, 14, v4")
    a("v_and_b32 v5, 3, v3")
    a("v_lshl_add_u32 v4, v5, 4, v4")
    a(f"s_lshl_b32 s{sT0}, s{sC}, 6")
    a(f"s_lshl_b32 s{sT1}, s{sW}, 19")
    a(f"s_add_u32 s{sT0}, s{sT0}, s{sT1}")
    for t in range(2):
        for r in range(2):
            a(f"buffer_load_dwordx4 {vr(SG_WQ+8*t+4*r,4)}, v4, s[{SRD_W}:{SRD_W+3}], s{sT0} offen")
            if not (t == 1 and r == 1):
                a(f"s_add_u32 s{sT0}, s{sT0}, {8192 if r == 0 else 16*2*8192 - 8192}")
    l_w2 = a.newlabel("ld_w2"); l_wdone = a.newlabel("ld_wdone")
    a(f"s_cmp_eq_u32 s{sTEAM}, 1")
    a(f"s_cbranch_scc1 {l_w2}")
    srd(a, SRD_W, 76, 512*1376*2)
    a(f"s_movk_i32 s{sT1}, {8*2752}")
    a(f"v_mul_lo_u32 v4, s{sT1}, v3")
    a(f"s_mul_i32 s{sT0}, s{sC}, 24")
    a(f"s_mul_i32 s{sT1}, s{sTW}, {2*2752}")
    a(f"s_add_u32 s{sT0}, s{sT0}, s{sT1}")
    for r in range(2):
        for q in range(3):
            a(f"buffer_load_dwordx2 {vr(SG_W12+6*r+2*q,2)}, v4, s[{SRD_W}:{SRD_W+3}], s{sT0} offen offset:{r*2752+q*8}")
    a(f"s_branch {l_wdone}")
    a.label(l_w2)
    srd(a, SRD_W, 78, 1376*512*2)
    a("v_lshlrev_b32 v4, 2, v3")
    a(f"s_mul_i32 s{sT0}, s{sC}, {12*1024}")
    a(f"s_lshl_b32 s{sT1}, s{sTW}, 8")
    a(f"s_add_u32 s{sT0}, s{sT0}, s{sT1}")
    for k in range(12):
        a(f"buffer_load_dword v{SG_W12+k}, v4, s[{SRD_W}:{SRD_W+3}], s{sT0} offen offset:{(k%4)*1024}")
        if k % 4 == 3 and k < 11: a(f"s_add_u32 s{sT0}, s{sT0}, 4096")
    a.label(l_wdone)

def stage_finish(a):
    a("v_lshrrev_b32 v7, 6, v0")
    a("v_and_b32 v8, 3, v7")
    a("v_lshrrev_b32 v7, 2, v7")
    a("v_lshlrev_b32 v7, 4, v7")
    a("v_lshl_add_u32 v7, v8, 13, v7")
    a("v_bfe_u32 v8, v0, 4, 2")
    a("v_lshl_add_u32 v7, v8, 10, v7")
    a(f"s_lshl_b32 s{sT0}, s{sW}, 7")
    a(f"s_add_u32 s{sT0}, s{sT0}, {L_WO}")
    a(f"v_add_u32 v7, s{sT0}, v7")
    for t in range(2):
        ra, rb = SG_WO + 8*t, SG_WO + 8*t + 4
        for half in range(2):
            for z in range(2):
                d = 2*half + z
                a(f"v_perm_b32 v{8+2*z}, v{rb+d}, v{ra+d}, s84")
                a(f"v_perm_b32 v{9+2*z}, v{rb+d}, v{ra+d}, s85")
            a(f"ds_write_b128 v7, v[8:11] offset:{t*64 + half*4096}")
    a("v_lshrrev_b32 v7, 6, v0")
    a("v_and_b32 v8, 3, v7")
    a("v_lshrrev_b32 v7, 2, v7")
    a("v_lshlrev_b32 v7, 4, v7")
    a("v_lshl_add_u32 v7, v8, 13, v7")
    a("v_bfe_u32 v8, v0, 4, 2")
    a("v_lshl_add_u32 v7, v8, 11, v7")
    a(f"s_lshl_b32 s{sT0}, s{sW}, 7")
    a(f"s_add_u32 s{sT0}, s{sT0}, {L_WQ}")
    a(f"v_add_u32 v7, s{sT0}, v7")
    for t in range(2):
        ra, rb = SG_WQ + 8*t, SG_WQ + 8*t + 4
        for half in range(2):
            for z in range(2):
                d = 2*half + z
                a(f"v_perm_b32 v{8+2*z}, v{rb+d}, v{ra+d}, s84")
                a(f"v_perm_b32 v{9+2*z}, v{rb+d}, v{ra+d}, s85")
            a(f"ds_write_b128 v7, v[8:11] offset:{t*64 + half*1024}")
    l_p2 = a.newlabel("pm_w2"); l_pdone = a.newlabel("pm_done"); l_nomask = a.newlabel("nomask")
    a(f"s_cmp_eq_u32 s{sTEAM}, 1")
    a(f"s_cbranch_scc1 {l_p2}")
    a(f"s_cmp_lg_u32 s{sC}, 114")
    a(f"s_cbranch_scc1 {l_nomask}")
    for r in (4, 5, 10, 11): a(f"v_mov_b32 v{SG_W12+r}, 0")
    a.label(l_nomask)
    a(f"s_mul_i32 s{sT0}, s{sTW}, 3072")
    a(f"s_add_u32 s{sT0}, s{sT0}, {L_W1}")
    a(f"v_add_u32 v7, s{sT0}, v0")
    for q in range(3):
        ra, rb = SG_W12 + 2*q, SG_W12 + 6 + 2*q
        a(f"v_perm_b32 v8, v{rb}, v{ra}, s84")
        a(f"v_perm_b32 v9, v{rb}, v{ra}, s85")
        a(f"v_perm_b32 v10, v{rb+1}, v{ra+1}, s84")
        a(f"v_perm_b32 v11, v{rb+1}, v{ra+1}, s85")
        a(f"ds_write_b128 v7, v[8:11] offset:{q*1024}")
    a(f"s_branch {l_pdone}")
    a.label(l_p2)
    a(f"s_lshl_b32 s{sT0}, s{sTW}, 10")
    a(f"s_add_u32 s{sT0}, s{sT0}, {L_W2}")
    a(f"v_add_u32 v7, s{sT0}, v0")
    for n in range(3):
        for z in range(2):
            k = SG_W12 + 4*n + 2*z
            a(f"v_perm_b32 v{8+2*z}, v{k+1}, v{k}, s84")
            a(f"v_perm_b32 v{9+2*z}, v{k+1}, v{k}, s85")
        a(f"ds_write_b128 v7, v[8:11] offset:{n*4096}")
    a.label(l_pdone)
    a("s_waitcnt lgkmcnt(0)")

def load_q1s(a):
    a("v_and_b32 v6, 0xf0, v0")
    a("v_lshrrev_b32 v7, 8, v0")
    a("v_lshl_add_u32 v7, v7, 14, v6")
    a(f"s_lshl_b32 s{sQO}, s{sG}, 13")
    a(f"s_lshl_b32 s{sT2}, s{sH}, 8")
    a(f"s_add_u32 s{sQO}, s{sQO}, s{sT2}")
    a(f"buffer_load_dwordx4 v[8:11], v7, s[{SRD_WS}:{SRD_WS+3}], s{sQO} offen offset:{WS_Q1} sc1")
    a(f"v_add_u32 v7, {L_Q1}, v0")
    a("s_waitcnt vmcnt(0)")
    a("ds_write_b128 v7, v[8:11]")
    a("s_waitcnt lgkmcnt(0)")

def wait_counter(a):
    lp = a.newlabel("wc"); dn = a.newlabel("wcd")
    a("v_mov_b32 v9, 0")
    a.label(lp)
    a(f"buffer_load_dword v8, v9, s[{SRD_DBG}:{SRD_DBG+3}], 0 offen sc1")
    a("s_waitcnt vmcnt(0)")
    a("v_cmp_gt_u32 vcc, 128, v8")
    a(f"s_cbranch_vccz {dn}")
    a("s_sleep 2")
    a(f"s_sub_u32 s{sTO}, s{sTO}, 1")
    a(f"s_cbranch_scc0 {lp}")
    a("s_branch main_bail")
    a.label(dn)

def gen_main():
    a = Asm()
    a.raw(f".globl {NAME}_kernel\n.p2align 8\n.type {NAME}_kernel,@function\n{NAME}_kernel:")
    a("s_cmp_ge_u32 s2, 256")
    a("s_cbranch_scc1 main_end")
    a("s_load_dwordx4 s[64:67], s[0:1], 8")
    a("s_load_dwordx2 s[68:69], s[0:1], 0")
    a("s_load_dwordx4 s[72:75], s[0:1], 24")
    a("s_load_dwordx4 s[76:79], s[0:1], 48")
    a("s_load_dwordx2 s[80:81], s[0:1], 64")
    a("s_load_dwordx2 s[82:83], s[0:1], 80")
    a("s_load_dwordx2 s[70:71], s[0:1], 72")
    a("v_lshrrev_b32 v2, 6, v0")
    a(f"v_readfirstlane_b32 s{sW}, v2")
    a("v_and_b32 v3, 63, v0")
    a("v_lshlrev_b32 v0, 4, v3")
    a(f"s_and_b32 s{sTW}, s{sW}, 3")
    a(f"s_lshr_b32 s{sTEAM}, s{sW}, 2")
    a(f"s_mul_i32 s{sVL}, s{sW}, 7168")
    a(f"v_add_u32 v1, s{sVL}, v0")
    a(f"s_mov_b32 s{sTO}, 400000")
    a("s_waitcnt lgkmcnt(0)")
    srd(a, SRD_K, 64, 1 << 28)
    srd(a, SRD_V, 66, 1 << 28)
    srd(a, SRD_WS, 82, 1 << 30)
    srd(a, SRD_X, 68, 8192)
    srd(a, SRD_OUT, 80, 8192)
    srd(a, SRD_DBG, 70, 256)
    a(f"s_getreg_b32 s{sX}, hwreg(HW_REG_XCC_ID)")
    a(f"s_and_b32 s{sX}, s{sX}, 7")
    l_nr = a.newlabel("norole")
    a(f"s_cmp_lg_u32 s{sW}, 0")
    a(f"s_cbranch_scc1 {l_nr}")
    a("v_mov_b32 v4, 1")
    a(f"s_lshl_b32 s{sT0}, s{sX}, 2")
    a(f"v_mov_b32 v5, s{sT0}")
    a("s_mov_b64 exec, 1")
    a(f"buffer_atomic_add v4, v5, s[{SRD_DBG}:{SRD_DBG+3}], 0 offen offset:64 sc0 sc1")
    a("s_waitcnt vmcnt(0)")
    a(f"v_mov_b32 v5, {L_ROLE}")
    a("ds_write_b32 v5, v4")
    a("s_waitcnt lgkmcnt(0)")
    a("s_mov_b64 exec, -1")
    a.label(l_nr)
    a("s_barrier")
    a(f"v_mov_b32 v5, {L_ROLE}")
    a("ds_read_b32 v4, v5")
    a("s_waitcnt lgkmcnt(0)")
    a(f"v_readfirstlane_b32 s{sT0}, v4")
    a(f"s_cmp_ge_u32 s{sT0}, 32")
    a("s_cbranch_scc1 main_end")
    a(f"s_and_b32 s{sG}, s{sT0}, 1")
    a(f"s_lshr_b32 s{sK}, s{sT0}, 1")
    a(f"s_lshl_b32 s{sC}, s{sX}, 4")
    a(f"s_add_u32 s{sC}, s{sC}, s{sK}")
    a(f"s_lshr_b32 s{sH}, s{sC}, 2")
    a(f"s_and_b32 s{sJ}, s{sC}, 3")
    a(f"s_lshl_b32 s{sKV0}, s{sC}, 18")
    a(f"s_lshl_b32 s{sT2}, s{sW}, 15")
    a(f"s_add_u32 s{sKV0}, s{sKV0}, s{sT2}")
    a(f"s_mov_b32 s84, 0x05040100"); a(f"s_mov_b32 s85, 0x07060302")
    a(f"s_mov_b32 s{sSTEP}, 0")
    stamp(a, 13, 26)
    stage_loads(a)
    a("s_barrier")
    l_g0 = a.newlabel("g0skip")
    a(f"s_cmp_eq_u32 s{sG}, 0")
    a(f"s_cbranch_scc1 {l_g0}")
    a("s_waitcnt vmcnt(0)")
    stage_finish(a)
    a(f"s_lshl_b32 s{sT0}, s{sW}, 10")
    a(f"buffer_load_dwordx4 v[10:13], v0, s[{SRD_X}:{SRD_X+3}], s{sT0} offen")
    for r in range(4): a(f"v_mov_b32 v{20+r}, -1")
    a(f"s_lshl_b32 s{sT0}, s{sW}, 10")
    a(f"v_add_u32 v24, s{sT0}, v0")
    a(f"s_mul_i32 s{sT0}, s{sC}, {NFILL*8192}")
    a(f"s_add_u32 s{sT0}, s{sT0}, {WS_AREA}")
    for i in range(NFILL):
        a(f"buffer_store_dwordx4 v[20:23], v24, s[{SRD_WS}:{SRD_WS+3}], s{sT0} offen sc1")
        if i < NFILL-1: a(f"s_add_u32 s{sT0}, s{sT0}, 0x2000")
    a(f"s_waitcnt vmcnt({NFILL})")
    for p in range(4):
        a(f"v_lshlrev_b32 v{2+2*p}, 16, v{10+p}")
        a(f"v_and_b32 v{3+2*p}, 0xffff0000, v{10+p}")
    layernorm(a, list(range(2, 10)), [10, 11, 12, 13], 14, 15, 16)
    a(f"s_lshl_b32 s{sT0}, s{sW}, 10")
    a(f"s_add_u32 s{sT0}, s{sT0}, {L_SC}")
    a(f"v_add_u32 v26, s{sT0}, v0")
    a("ds_write_b128 v26, v[10:13]")
    a("s_waitcnt lgkmcnt(0)")
    a("s_barrier")
    a(f"s_lshl_b32 s{sT0}, s{sW}, 10")
    a(f"s_add_u32 s{sT0}, s{sT0}, {L_WQ}")
    a(f"v_add_u32 v26, s{sT0}, v0")
    for p in range(4):
        a(f"ds_read_b128 {vr(32+4*p,4)}, v26 offset:{p*8192}")
    a(f"v_add_u32 v26, {L_SC}, v0")
    a("v_mov_b32 v25, 0")
    a(f"s_lshl_b32 s{sT2}, s{sC}, 6")
    a(f"s_lshl_b32 s{sT1}, s{sW}, 3")
    a(f"s_add_u32 s{sT2}, s{sT2}, s{sT1}")
    for b in range(8):
        a(f"ds_read_b128 v[10:13], v26 offset:{b*1024}")
        a("s_waitcnt lgkmcnt(0)")
        for p in range(4):
            for c in range(4):
                if p == 0: a(f"v_dot2_f32_bf16 v{2+c}, v{32+c}, v10, 0")
                else: a(f"v_dot2_f32_bf16 v{2+c}, v{32+4*p+c}, v{10+p}, v{2+c}")
        wave_reduce4(a, 2, 3, 4, 5)
        bfround(a, 2, 6)
        for rho in range(4):
            a(f"v_readlane_b32 s{sHP+rho}, v2, {16*rho}")
        a(f"s_pack_hh_b32_b16 s{sHP}, s{sHP}, s{sHP+1}")
        a(f"s_pack_hh_b32_b16 s{sHP+1}, s{sHP+2}, s{sHP+3}")
        a(f"v_mov_b32 v2, s{sHP}")
        a(f"v_mov_b32 v3, s{sHP+1}")
        a(f"s_add_u32 s{sT0}, s{sT2}, {WS_Q1 + b*8192}")
        a("s_mov_b64 exec, 1")
        a(f"buffer_store_dwordx2 v[2:3], v25, s[{SRD_WS}:{SRD_WS+3}], s{sT0} offen sc1")
        a("s_mov_b64 exec, -1")
    a("s_waitcnt vmcnt(0)")
    a("s_barrier")
    l_na = a.newlabel("noatom")
    a(f"s_cmp_lg_u32 s{sW}, 0")
    a(f"s_cbranch_scc1 {l_na}")
    a("v_mov_b32 v2, 1")
    a("s_mov_b64 exec, 1")
    a(f"buffer_atomic_add v2, v25, s[{SRD_DBG}:{SRD_DBG+3}], 0 offen sc1")
    a("s_mov_b64 exec, -1")
    a.label(l_na)
    wait_counter(a)
    load_q1s(a)
    a(f"s_mul_i32 s{sT0}, s{sC}, {REC_STRIDE}")
    a(f"s_add_u32 s{sT0}, s{sT0}, {WS_AREA}")
    a("v_mov_b32 v4, 0")
    poll(a, [f"buffer_load_dword v2, v4, s[{SRD_WS}:{SRD_WS+3}], s{sT0} offen offset:{O_REC+512} sc1"], [2], 3)
    a.label(l_g0)
    a.label("step_loop")
    a(f"s_mul_i32 s{sT0}, s{sG}, 5")
    a(f"s_add_u32 s{sT0}, s{sT0}, s{sSTEP}")
    a(f"s_mul_i32 s{sAREA0}, s{sT0}, {2*AREA}")
    a(f"s_add_u32 s{sAREA0}, s{sAREA0}, {WS_AREA}")
    a(f"s_mul_i32 s{sT1}, s{sTEAM}, {AREA}")
    a(f"s_add_u32 s{sAREA}, s{sAREA0}, s{sT1}")
    a(f"s_add_u32 s{sAREAN}, s{sAREA0}, {3*AREA}")
    stamp(a, 0, 12)
    l_noatt = a.newlabel("noatt1")
    a(f"s_cmp_eq_u32 s{sSTEP}, 4")
    a(f"s_cbranch_scc1 {l_noatt}")
    l_s0 = a.newlabel("notstep0"); l_qd = a.newlabel("qdone")
    a(f"s_cmp_lg_u32 s{sSTEP}, 0")
    a(f"s_cbranch_scc1 {l_s0}")
    a(f"s_lshl_b32 s{sKV}, s{sG}, 25")
    a(f"s_add_u32 s{sKV}, s{sKV}, s{sKV0}")
    for gi in range(12): issue_group(a, gi)
    l_ns = a.newlabel("nostage")
    a(f"s_cmp_lg_u32 s{sG}, 0")
    a(f"s_cbranch_scc1 {l_ns}")
    a("s_waitcnt vmcnt(48)")
    stage_finish(a)
    a.label(l_ns)
    for gi in range(12, 16): issue_group(a, gi)
    a(f"s_cmp_lg_u32 s{sG}, 0")
    a(f"s_cbranch_scc1 {l_qd}")
    wait_counter(a)
    load_q1s(a)
    a(f"s_branch {l_qd}")
    a.label(l_s0)
    for gi in range(RG, 16): issue_group(a, gi)
    a.label(l_qd)
    a(f"s_lshl_b32 s{sT0}, s{sSTEP}, 8")
    a(f"s_add_u32 s{sT0}, s{sT0}, {L_Q1}")
    a("v_and_b32 v6, 0xf0, v0")
    a(f"v_add_u32 v6, s{sT0}, v6")
    a(f"ds_read_b128 {vr(Q[0],4)}, v6")
    a("s_waitcnt lgkmcnt(0)")
    attention(a, True)
    stamp(a, 1)
    epilogue(a, L_EP0, sAREA0)
    stamp(a, 2, 26)
    a.label(l_noatt)
    chain(a)
    a(f"s_cmp_eq_u32 s{sSTEP}, 4")
    a("s_cbranch_scc1 main_end")
    stage_q(a)
    stamp(a, 10)
    a(f"s_add_u32 s{sKV}, s{sKV}, {2 << 25}")
    attention(a, False, True)
    stamp(a, 11)
    epilogue(a, L_EP1, sAREAN)
    stamp(a, 12, 26)
    a(f"s_add_u32 s{sSTEP}, s{sSTEP}, 1")
    a("s_branch step_loop")
    a.raw("main_bail:")
    a.raw("main_end:")
    a("s_endpgm")
    sys.stderr.write(f"main: {len(a.lines)} lines, {a.nnops} nops\n")
    return a.text() + kd(f"{NAME}_kernel", 256, 100)

def red8(a, regs, t):
    for sw in (32, 16):
        for r in regs:
            a(f"v_mov_b32 v{t}, v{r}")
            a(f"v_permlane{sw}_swap_b32 v{r}, v{t}")
            a(f"v_add_f32 v{r}, v{r}, v{t}")
    for r in regs:
        a(f"v_add_f32_dpp v{r}, v{r}, v{r} row_ror:8 {DPP}")

def chain(a):
    ws = f"s[{SRD_WS}:{SRD_WS+3}]"
    sACT, sLEAD = 54, 55
    a(f"s_lshl_b32 s{sT0}, s{sTEAM}, 2")
    a(f"s_sub_u32 s{sT0}, 4, s{sT0}")
    a(f"s_cmp_lg_u32 s{sSTEP}, s{sT0}")
    a(f"s_cselect_b32 s{sACT}, 1, 0")
    a(f"s_cmp_eq_u32 s{sTW}, 0")
    a(f"s_cselect_b32 s{sLEAD}, s{sACT}, 0")
    lane_id(a, 27)
    l1 = a.newlabel("nos1a")
    a(f"s_cmp_eq_u32 s{sACT}, 0")
    a(f"s_cbranch_scc1 {l1}")
    a("v_lshlrev_b32 v26, 3, v27")
    a("v_mov_b32 v25, 0")
    a(f"s_lshl_b32 s{sT0}, s{sX}, 2")
    a(f"s_add_u32 s{sT0}, s{sT0}, s{sTW}")
    a(f"s_mul_i32 s{sT0}, s{sT0}, {4*REC_STRIDE}")
    a(f"s_add_u32 s{sT0}, s{sT0}, s{sAREA}")
    loads = []
    for i in range(4):
        loads.append(f"buffer_load_dwordx2 {vr(2+2*i,2)}, v26, {ws}, s{sT0} offen offset:{O_REC+i*REC_STRIDE} sc1")
        loads.append(f"buffer_load_dwordx2 {vr(10+2*i,2)}, v25, {ws}, s{sT0} offen offset:{O_REC+i*REC_STRIDE+512} sc1")
    poll(a, loads, list(range(2, 18)), 24)
    stamp(a, 3, 20)
    a("v_max3_f32 v24, v10, v12, v14")
    a("v_max_f32 v24, v24, v16")
    for i in range(4): a(f"v_sub_f32 v{10+2*i}, v{10+2*i}, v24")
    for i in range(4): a(f"v_mul_f32 v{10+2*i}, 0x{LOG2E:x}, v{10+2*i}")
    for i in range(4): a(f"v_exp_f32 v{10+2*i}, v{10+2*i}")
    a("v_mul_f32 v24, v11, v10")
    a("v_mul_f32 v2, v2, v10")
    a("v_mul_f32 v3, v3, v10")
    for i in range(1, 4):
        a(f"v_fma_f32 v24, v{11+2*i}, v{10+2*i}, v24")
        a(f"v_fma_f32 v2, v{2+2*i}, v{10+2*i}, v2")
        a(f"v_fma_f32 v3, v{3+2*i}, v{10+2*i}, v3")
    a("v_rcp_f32 v24, v24")
    a("v_mul_f32 v2, v2, v24")
    a("v_mul_f32 v3, v3, v24")
    a("v_cvt_pk_bf16_f32 v2, v2, v3")
    a(f"s_lshl_b32 s{sT0}, s{sW}, 8")
    a(f"s_add_u32 s{sT0}, s{sT0}, {L_OB}")
    a("v_lshlrev_b32 v26, 2, v27")
    a(f"v_add_u32 v26, s{sT0}, v26")
    a("ds_write_b32 v26, v2")
    a("s_waitcnt lgkmcnt(0)")
    a.label(l1)
    a("s_barrier")
    l_na1 = a.newlabel("na1")
    a(f"s_cmp_eq_u32 s{sACT}, 0")
    a(f"s_cbranch_scc1 {l_na1}")
    a(f"s_lshl_b32 s{sT0}, s{sTEAM}, 10")
    a(f"s_add_u32 s{sT0}, s{sT0}, {L_OB}")
    a(f"v_add_u32 v26, s{sT0}, v0")
    a("ds_read_b128 v[2:5], v26")
    a(f"s_lshl_b32 s{sT0}, s{sTW}, 10")
    a(f"s_add_u32 s{sT0}, s{sT0}, {L_WO}")
    a(f"v_add_u32 v26, s{sT0}, v0")
    for p in range(4):
        a(f"ds_read_b128 v[14:17], v26 offset:{(p*2)*4096}")
        a(f"ds_read_b128 v[18:21], v26 offset:{(p*2+1)*4096}")
        a("s_waitcnt lgkmcnt(0)")
        for d in range(8):
            if p == 0: a(f"v_dot2_f32_bf16 v{6+d}, v{14+d}, v2, 0")
            else: a(f"v_dot2_f32_bf16 v{6+d}, v{14+d}, v{2+p}, v{6+d}")
    wave_reduce4(a, 6, 7, 8, 9)
    wave_reduce4(a, 10, 11, 12, 13)
    for u in range(2):
        for rho in range(4):
            a(f"v_readlane_b32 s{sHP+4*u+rho}, v{6+4*u}, {16*rho}")
    for d in range(8): a(f"v_mov_b32 v{14+d}, s{sHP+d}")
    a("v_lshlrev_b32 v26, 10, v0")
    a(f"s_lshl_b32 s{sT0}, s{sK}, 10")
    a(f"s_lshl_b32 s{sT1}, s{sX}, 7")
    a(f"s_add_u32 s{sT0}, s{sT0}, s{sT1}")
    a(f"s_lshl_b32 s{sT1}, s{sTW}, 5")
    a(f"s_add_u32 s{sT0}, s{sT0}, s{sT1}")
    a(f"s_add_u32 s{sT0}, s{sT0}, s{sAREA}")
    a(f"s_add_u32 s{sT0}, s{sT0}, {O_YPF}")
    a("s_mov_b64 exec, 0xff")
    a(f"buffer_store_dwordx4 v[14:17], v26, {ws}, s{sT0} offen sc1")
    a(f"buffer_store_dwordx4 v[18:21], v26, {ws}, s{sT0} offen offset:16 sc1")
    a("s_mov_b64 exec, -1")
    stamp(a, 4)
    a(f"s_cmp_eq_u32 s{sLEAD}, 0")
    a(f"s_cbranch_scc1 {l_na1}")
    l_r1 = a.newlabel("res1"); l_rd = a.newlabel("resd")
    a("v_and_b32 v26, 7, v27")
    a(f"s_cmp_eq_u32 s{sTEAM}, 1")
    a(f"s_cbranch_scc1 {l_r1}")
    a(f"s_lshl_b32 s{sT0}, s{sSTEP}, 1")
    a(f"s_add_u32 s{sT0}, s{sT0}, s{sG}")
    a(f"s_lshl_b32 s{sT0}, s{sT0}, 10")
    a(f"s_lshl_b32 s{sT1}, s{sK}, 6")
    a(f"s_add_u32 s{sT0}, s{sT0}, s{sT1}")
    a("v_lshlrev_b32 v25, 3, v26")
    a(f"buffer_load_dwordx2 v[14:15], v25, s[{SRD_X}:{SRD_X+3}], s{sT0} offen")
    a("s_waitcnt vmcnt(0)")
    a("v_lshlrev_b32 v10, 16, v14")
    a("v_and_b32 v11, 0xffff0000, v14")
    a("v_lshlrev_b32 v12, 16, v15")
    a("v_and_b32 v13, 0xffff0000, v15")
    a(f"s_branch {l_rd}")
    a.label(l_r1)
    a("v_lshlrev_b32 v25, 4, v26")
    a(f"v_add_u32 v25, {L_XRES}, v25")
    a("ds_read_b128 v[10:13], v25")
    a("s_waitcnt lgkmcnt(0)")
    a.label(l_rd)
    a(f"s_lshl_b32 s{sT0}, s{sC}, 10")
    a(f"s_add_u32 s{sT0}, s{sT0}, s{sAREA}")
    a(f"s_add_u32 s{sT0}, s{sT0}, {O_YPF}")
    poll(a, [f"buffer_load_dwordx4 v[4:7], v0, {ws}, s{sT0} offen sc1"], [4, 5, 6, 7], 24)
    red8(a, [4, 5, 6, 7], 8)
    resid_round(a)
    a(f"s_lshl_b32 s{sT0}, s{sTEAM}, 7")
    a(f"s_add_u32 s{sT0}, s{sT0}, {L_X1O}")
    a("v_lshlrev_b32 v25, 4, v26")
    a(f"v_add_u32 v25, s{sT0}, v25")
    a("ds_write_b128 v25, v[10:13]")
    local_pub(a, O_X1L)
    stamp(a, 5)
    a(f"s_cmp_ge_u32 s{sC}, {NZP}")
    a(f"s_cbranch_scc1 {l_na1}")
    xpoll_ln(a, sAREA, O_X1L, 6)
    a(f"s_lshl_b32 s{sT0}, s{sTEAM}, 10")
    a(f"s_add_u32 s{sT0}, s{sT0}, {L_XB}")
    a(f"v_add_u32 v26, s{sT0}, v0")
    a("ds_write_b128 v26, v[18:21]")
    a.label(l_na1)
    a("s_waitcnt lgkmcnt(0)")
    a("s_barrier")
    l_na2 = a.newlabel("na2"); l_zp = a.newlabel("zpub")
    a(f"s_cmp_eq_u32 s{sACT}, 0")
    a(f"s_cbranch_scc1 {l_na2}")
    a("v_mov_b32 v2, 0"); a("v_mov_b32 v3, 0")
    a(f"s_cmp_ge_u32 s{sC}, {NZP}")
    a(f"s_cbranch_scc1 {l_zp}")
    a(f"s_lshl_b32 s{sT0}, s{sTEAM}, 10")
    a(f"s_add_u32 s{sT0}, s{sT0}, {L_XB}")
    a(f"v_add_u32 v26, s{sT0}, v0")
    a("ds_read_b128 v[10:13], v26")
    acc = [2, 3, 4, 5, 6, 7, 8, 9, 14, 15, 16, 17]
    a(f"v_add_u32 v26, {L_W1}, v0")
    for ip in range(4):
        for q in range(3):
            a(f"ds_read_b128 v[22:25], v26 offset:{(3*ip+q)*1024}")
            a("s_waitcnt lgkmcnt(0)")
            for z in range(4):
                if ip == 0: a(f"v_dot2_f32_bf16 v{acc[4*q+z]}, v{22+z}, v{10+ip}, 0")
                else: a(f"v_dot2_f32_bf16 v{acc[4*q+z]}, v{22+z}, v{10+ip}, v{acc[4*q+z]}")
    for q in range(3):
        wave_reduce4(a, *acc[4*q:4*q+4])
    hs = [acc[0], acc[4], acc[8]]
    for q in range(3):
        h = hs[q]
        bfround(a, h, 22)
        a(f"v_mul_f32 v23, 0x{LOG2E ^ 0x80000000:x}, v{h}")
        a("v_exp_f32 v23, v23")
        a("v_add_f32 v23, 1.0, v23")
        a("v_rcp_f32 v23, v23")
        a(f"v_mul_f32 v{h}, v{h}, v23")
        bfround(a, h, 22)
    for q in range(3):
        for rho in range(4):
            a(f"v_readlane_b32 s{sHP+4*q+rho}, v{hs[q]}, {16*rho}")
    for k in range(6):
        a(f"s_pack_hh_b32_b16 s{sHP+k}, s{sHP+2*k}, s{sHP+2*k+1}")
    a(f"s_lshl_b32 s{sT0}, s{sTW}, 10")
    a(f"s_add_u32 s{sT0}, s{sT0}, {L_W2}")
    a(f"v_add_u32 v26, s{sT0}, v0")
    for n in range(3):
        a(f"ds_read_b128 {vr(6+4*n,4)}, v26 offset:{n*4096}")
    a("v_mov_b32 v2, 0"); a("v_mov_b32 v3, 0")
    a("s_waitcnt lgkmcnt(0)")
    for n in range(3):
        for z in range(2):
            a(f"v_dot2c_f32_bf16 v2, s{sHP+2*n+z}, v{6+4*n+2*z}")
            a(f"v_dot2c_f32_bf16 v3, s{sHP+2*n+z}, v{7+4*n+2*z}")
    a.label(l_zp)
    a(f"v_mov_b32_dpp v4, v2 quad_perm:[1,1,3,3] {DPP}")
    a(f"v_mov_b32_dpp v5, v3 quad_perm:[1,1,3,3] {DPP}")
    a("v_lshrrev_b32 v26, 4, v27")
    a("v_lshlrev_b32 v26, 11, v26")
    a("v_bfe_u32 v25, v27, 1, 3")
    a("v_lshl_add_u32 v26, v25, 4, v26")
    a("v_and_b32 v25, 1, v27")
    a(f"s_lshl_b32 s{sT0}, s{sX}, 15")
    a(f"s_lshl_b32 s{sT1}, s{sTW}, 13")
    a(f"s_add_u32 s{sT0}, s{sT0}, s{sT1}")
    a(f"s_lshl_b32 s{sT1}, s{sK}, 7")
    a(f"s_add_u32 s{sT0}, s{sT0}, s{sT1}")
    a(f"s_add_u32 s{sT0}, s{sT0}, s{sAREA}")
    a(f"s_add_u32 s{sT0}, s{sT0}, {O_ZPL}")
    a("v_cmp_eq_u32 vcc, 0, v25")
    a(f"s_and_saveexec_b64 s[{sEX}:{sEX+1}], vcc")
    a(f"buffer_store_dwordx4 v[2:5], v26, {ws}, s{sT0} offen")
    a("s_mov_b64 exec, -1")
    stamp(a, 7)
    a(f"s_cmp_eq_u32 s{sLEAD}, 0")
    a(f"s_cbranch_scc1 {l_na2}")
    a(f"s_lshl_b32 s{sT0}, s{sC}, 11")
    a(f"s_add_u32 s{sT0}, s{sT0}, s{sAREA}")
    a(f"s_add_u32 s{sT0}, s{sT0}, {O_ZPL}")
    poll(a, [f"buffer_load_dwordx4 v[4:7], v0, {ws}, s{sT0} offen sc1",
             f"buffer_load_dwordx4 v[8:11], v0, {ws}, s{sT0} offen offset:1024 sc1"], list(range(4, 12)), 24)
    for r in range(4): a(f"v_add_f32 v{4+r}, v{4+r}, v{8+r}")
    red8(a, [4, 5, 6, 7], 8)
    a("v_lshrrev_b32 v26, 3, v27")
    a("v_lshlrev_b32 v26, 14, v26")
    a("v_and_b32 v25, 7, v27")
    a("v_lshl_add_u32 v26, v25, 4, v26")
    a(f"s_lshl_b32 s{sT0}, s{sK}, 10")
    a(f"s_lshl_b32 s{sT1}, s{sX}, 7")
    a(f"s_add_u32 s{sT0}, s{sT0}, s{sT1}")
    a(f"s_add_u32 s{sT0}, s{sT0}, s{sAREA}")
    a(f"s_add_u32 s{sT0}, s{sT0}, {O_ZPF}")
    a(f"buffer_store_dwordx4 v[4:7], v26, {ws}, s{sT0} offen sc1")
    stamp(a, 14)
    a("v_and_b32 v26, 7, v27")
    a(f"s_lshl_b32 s{sT0}, s{sTEAM}, 7")
    a(f"s_add_u32 s{sT0}, s{sT0}, {L_X1O}")
    a("v_lshlrev_b32 v25, 4, v26")
    a(f"v_add_u32 v25, s{sT0}, v25")
    a("ds_read_b128 v[10:13], v25")
    a(f"s_lshl_b32 s{sT0}, s{sC}, 10")
    a(f"s_add_u32 s{sT0}, s{sT0}, s{sAREA}")
    a(f"s_add_u32 s{sT0}, s{sT0}, {O_ZPF}")
    poll(a, [f"buffer_load_dwordx4 v[4:7], v0, {ws}, s{sT0} offen sc1"], [4, 5, 6, 7], 24)
    a("s_waitcnt lgkmcnt(0)")
    red8(a, [4, 5, 6, 7], 8)
    resid_round(a)
    l_o = a.newlabel("outw")
    a(f"s_cmp_eq_u32 s{sTEAM}, 1")
    a(f"s_cbranch_scc1 {l_o}")
    local_pub(a, O_X2L)
    a("v_lshlrev_b32 v25, 4, v26")
    a(f"v_add_u32 v25, {L_XRES}, v25")
    a("ds_write_b128 v25, v[10:13]")
    a("s_waitcnt lgkmcnt(0)")
    stamp(a, 8)
    a(f"s_branch {l_na2}")
    a.label(l_o)
    a(f"s_cmp_lg_u32 s{sX}, 0")
    a(f"s_cbranch_scc1 {l_na2}")
    a("v_lshlrev_b32 v25, 3, v26")
    a(f"s_lshl_b32 s{sT0}, s{sSTEP}, 1")
    a(f"s_add_u32 s{sT0}, s{sT0}, s{sG}")
    a(f"s_sub_u32 s{sT0}, s{sT0}, 2")
    a(f"s_lshl_b32 s{sT0}, s{sT0}, 10")
    a(f"s_lshl_b32 s{sT1}, s{sK}, 6")
    a(f"s_add_u32 s{sT0}, s{sT0}, s{sT1}")
    a("s_mov_b64 exec, 0xff")
    a(f"buffer_store_dwordx2 v[14:15], v25, s[{SRD_OUT}:{SRD_OUT+3}], s{sT0} offen")
    a("s_mov_b64 exec, -1")
    stamp(a, 8)
    a.label(l_na2)

def resid_round(a):
    bfround2(a, 4, 5, 8)
    bfround2(a, 6, 7, 8)
    for r in range(4): a(f"v_add_f32 v{10+r}, v{10+r}, v{4+r}")
    a("v_cvt_pk_bf16_f32 v14, v10, v11")
    a("v_cvt_pk_bf16_f32 v15, v12, v13")
    a("v_lshlrev_b32 v10, 16, v14")
    a("v_and_b32 v11, 0xffff0000, v14")
    a("v_lshlrev_b32 v12, 16, v15")
    a("v_and_b32 v13, 0xffff0000, v15")

def local_pub(a, off):
    ws = f"s[{SRD_WS}:{SRD_WS+3}]"
    a("v_lshlrev_b32 v24, 3, v26")
    a(f"s_lshl_b32 s{sT0}, s{sX}, 10")
    a(f"s_lshl_b32 s{sT1}, s{sK}, 6")
    a(f"s_add_u32 s{sT0}, s{sT0}, s{sT1}")
    a(f"s_add_u32 s{sT0}, s{sT0}, s{sAREA}")
    a(f"s_add_u32 s{sT0}, s{sT0}, {off}")
    a("s_mov_b64 exec, 0xff")
    a(f"buffer_store_dwordx2 v[14:15], v24, {ws}, s{sT0} offen")
    a("s_mov_b64 exec, -1")

def xpoll_ln(a, s_area, off, stamp_idx):
    ws = f"s[{SRD_WS}:{SRD_WS+3}]"
    a(f"s_lshl_b32 s{sT0}, s{sX}, 10")
    a(f"s_add_u32 s{sT0}, s{sT0}, s{s_area}")
    a(f"s_add_u32 s{sT0}, s{sT0}, {off}")
    poll(a, [f"buffer_load_dwordx4 v[2:5], v0, {ws}, s{sT0} offen sc1"], [2, 3, 4, 5], 24)
    stamp(a, stamp_idx)
    for p in range(4):
        a(f"v_lshlrev_b32 v{10+2*p}, 16, v{2+p}")
        a(f"v_and_b32 v{11+2*p}, 0xffff0000, v{2+p}")
    layernorm(a, list(range(10, 18)), [18, 19, 20, 21], 22, 23, 24)

def stage_q(a):
    ws = f"s[{SRD_WS}:{SRD_WS+3}]"
    l0 = a.newlabel("nos3a")
    a(f"s_cmp_lg_u32 s{sW}, 0")
    a(f"s_cbranch_scc1 {l0}")
    xpoll_ln(a, sAREA0, O_X2L, 9)
    a(f"v_add_u32 v26, {L_XB}, v0")
    a("ds_write_b128 v26, v[18:21]")
    a("s_waitcnt lgkmcnt(0)")
    a.label(l0)
    a("s_barrier")
    a(f"v_add_u32 v26, {L_XB}, v0")
    a("ds_read_b128 v[10:13], v26")
    a(f"s_lshl_b32 s{sT0}, s{sW}, 10")
    a(f"s_add_u32 s{sT0}, s{sT0}, {L_WQ}")
    a(f"v_add_u32 v26, s{sT0}, v0")
    for p in range(2):
        a(f"ds_read_b128 v[14:17], v26 offset:{(2*p)*8192}")
        a(f"ds_read_b128 v[18:21], v26 offset:{(2*p+1)*8192}")
        a("s_waitcnt lgkmcnt(0)")
        for u in range(2):
            for c in range(4):
                if p == 0 and u == 0: a(f"v_dot2_f32_bf16 v{2+c}, v{14+c}, v10, 0")
                else: a(f"v_dot2_f32_bf16 v{2+c}, v{14+4*u+c}, v{10+2*p+u}, v{2+c}")
    wave_reduce4(a, 2, 3, 4, 5)
    bfround(a, 2, 6)
    for rho in range(4):
        a(f"v_readlane_b32 s{sHP+rho}, v2, {16*rho}")
    a(f"s_pack_hh_b32_b16 s{sHP}, s{sHP}, s{sHP+1}")
    a(f"s_pack_hh_b32_b16 s{sHP+1}, s{sHP+2}, s{sHP+3}")
    a(f"v_mov_b32 v2, s{sHP}")
    a(f"v_mov_b32 v3, s{sHP+1}")
    a("v_mov_b32 v4, 0")
    a(f"s_lshl_b32 s{sT0}, s{sC}, 6")
    a(f"s_lshl_b32 s{sT1}, s{sW}, 3")
    a(f"s_add_u32 s{sT0}, s{sT0}, s{sT1}")
    a(f"s_add_u32 s{sT0}, s{sT0}, s{sAREA0}")
    a(f"s_add_u32 s{sT0}, s{sT0}, {O_Q2}")
    a("s_mov_b64 exec, 1")
    a(f"buffer_store_dwordx2 v[2:3], v4, {ws}, s{sT0} offen")
    a("s_mov_b64 exec, -1")
    l1 = a.newlabel("noq2")
    a("v_and_b32 v6, 0xf0, v0")
    a(f"s_cmp_lg_u32 s{sW}, 0")
    a(f"s_cbranch_scc1 {l1}")
    a(f"s_lshl_b32 s{sT0}, s{sH}, 8")
    a(f"s_add_u32 s{sT0}, s{sT0}, s{sAREA0}")
    a(f"s_add_u32 s{sT0}, s{sT0}, {O_Q2}")
    poll(a, [f"buffer_load_dwordx4 {vr(Q[0],4)}, v6, {ws}, s{sT0} offen sc1"], Q, 24)
    a(f"v_add_u32 v7, {L_QB}, v6")
    a(f"ds_write_b128 v7, {vr(Q[0],4)}")
    a("s_waitcnt lgkmcnt(0)")
    a.label(l1)
    a("s_barrier")
    a(f"v_add_u32 v7, {L_QB}, v6")
    a(f"ds_read_b128 {vr(Q[0],4)}, v7")
    a("s_waitcnt lgkmcnt(0)")

if __name__ == "__main__":
    out = header() + gen_main()
    path = sys.argv[1] if len(sys.argv) > 1 else f"cdna_kernels/{NAME}.s"
    open(path, "w").write(out)
```

```python
import sys, os
from asmdsl import Asm
PROFILE = int(os.environ.get("PROFILE", "0"))
WS_PROF = 0x2000000

NAME = "interleave_layers__gqa_block_cached__dense_activation_silu__decode"
LOG2E = 0x3fb8aa3b
SCALE = 0x3db504f3
EPS = 0x3727c5ac
INV512 = 0x3b000000

WS_Q1 = 0x0
WS_AREA = 0x100000
AREA = 0xA0000
O_REC, REC_STRIDE = 0x0, 576
O_YPF = 0x12000
O_X1L = 0x32000
O_ZPL = 0x34000
O_ZPF = 0x74000
O_X2L = 0x94000
O_Q2 = 0x96000
NZP = 115
NFILL = 13

L_V = 0
L_WO = 57344
L_WQ = 90112
L_W1 = 122880
L_W2 = 135168
L_SC = 147456
L_EP0 = L_SC
L_EP1 = L_SC + 4608
L_XRES = L_SC + 9216
L_OB = L_SC + 9472
L_XB = L_SC + 11520
L_QB = L_SC + 13568
L_Q1 = L_SC + 13824
L_X1O = L_SC + 14848
L_ROLE = L_SC + 15104

def header():
    return f"""; generated by dev/gen.py
; @launch grid=(256,1,1) block=(512,1,1) lds=163840
.amdgcn_target "amdgcn-amd-amdhsa--gfx950"
.text
"""

def kd(name, vgpr, sgpr):
    return f""".section .rodata,"a"
.p2align 6
.amdhsa_kernel {name}
  .amdhsa_next_free_vgpr {vgpr}
  .amdhsa_next_free_sgpr {sgpr}
  .amdhsa_accum_offset {(vgpr+3)//4*4}
  .amdhsa_group_segment_fixed_size 0
  .amdhsa_kernarg_size 88
  .amdhsa_user_sgpr_count 2
  .amdhsa_user_sgpr_kernarg_segment_ptr 1
  .amdhsa_system_sgpr_workgroup_id_x 1
.end_amdhsa_kernel
.text
"""

DPP = "row_mask:0xf bank_mask:0xf"

def v(n): return f"v{n}"
def vr(n, k): return f"v[{n}:{n+k-1}]"

def allreduce_add(a, x, t):
    for r in (8, 4, 2, 1):
        a(f"v_add_f32_dpp v{x}, v{x}, v{x} row_ror:{r} {DPP}")
    for sw in (16, 32):
        a(f"v_mov_b32 v{t}, v{x}")
        a(f"v_permlane{sw}_swap_b32 v{x}, v{t}")
        a(f"v_add_f32 v{x}, v{x}, v{t}")

def wave_reduce4(a, r0, r1, r2, r3):
    a(f"v_permlane32_swap_b32 v{r0}, v{r2}")
    a(f"v_permlane32_swap_b32 v{r1}, v{r3}")
    a(f"v_add_f32 v{r0}, v{r0}, v{r2}")
    a(f"v_add_f32 v{r1}, v{r1}, v{r3}")
    a(f"v_permlane16_swap_b32 v{r0}, v{r1}")
    a(f"v_add_f32 v{r0}, v{r0}, v{r1}")
    for r in (8, 4, 2, 1):
        a(f"v_add_f32_dpp v{r0}, v{r0}, v{r0} row_ror:{r} {DPP}")

def bfround(a, x, t):
    a(f"v_cvt_pk_bf16_f32 v{t}, v{x}, v{x}")
    a(f"v_lshlrev_b32 v{x}, 16, v{t}")

def bfround2(a, x, y, t):
    a(f"v_cvt_pk_bf16_f32 v{t}, v{x}, v{y}")
    a(f"v_lshlrev_b32 v{x}, 16, v{t}")
    a(f"v_and_b32 v{y}, 0xffff0000, v{t}")

def layernorm(a, x, xp, t0, t1, t2):
    a(f"v_add_f32 v{t0}, v{x[0]}, v{x[1]}")
    for i in range(2, 8):
        a(f"v_add_f32 v{t0}, v{t0}, v{x[i]}")
    allreduce_add(a, t0, t1)
    a(f"v_mul_f32 v{t0}, 0x{INV512:x}, v{t0}")
    a(f"v_sub_f32 v{t2}, v{x[0]}, v{t0}")
    a(f"v_mul_f32 v{t1}, v{t2}, v{t2}")
    for i in range(1, 8):
        a(f"v_sub_f32 v{t2}, v{x[i]}, v{t0}")
        a(f"v_fma_f32 v{t1}, v{t2}, v{t2}, v{t1}")
    allreduce_add(a, t1, t2)
    a(f"v_mul_f32 v{t1}, 0x{INV512:x}, v{t1}")
    bfround2(a, t0, t1, t2)
    a(f"v_add_f32 v{t1}, 0x{EPS:x}, v{t1}")
    bfround(a, t1, t2)
    a(f"v_sqrt_f32 v{t1}, v{t1}")
    bfround(a, t1, t2)
    a(f"v_rcp_f32 v{t1}, v{t1}")
    for p in range(4):
        x0, x1 = x[2*p], x[2*p+1]
        a(f"v_sub_f32 v{x0}, v{x0}, v{t0}")
        a(f"v_sub_f32 v{x1}, v{x1}, v{t0}")
        bfround2(a, x0, x1, t2)
        a(f"v_mul_f32 v{x0}, v{x0}, v{t1}")
        a(f"v_mul_f32 v{x1}, v{x1}, v{t1}")
        a(f"v_cvt_pk_bf16_f32 v{xp[p]}, v{x0}, v{x1}")

def srd(a, d, pair, nbytes):
    a(f"s_mov_b32 s{d}, s{pair}")
    a(f"s_and_b32 s{d+1}, s{pair+1}, 0xffff")
    a(f"s_mov_b32 s{d+2}, 0x{nbytes:x}")
    a(f"s_mov_b32 s{d+3}, 0x00020000")

def gen_init():
    a = Asm()
    a.raw(".globl init_kernel\n.p2align 8\n.type init_kernel,@function\ninit_kernel:")
    a("s_cmp_ge_u32 s2, 256")
    a("s_cbranch_scc1 init_end")
    a("s_load_dwordx2 s[4:5], s[0:1], 0")
    a("s_load_dwordx2 s[6:7], s[0:1], 24")
    a("s_load_dwordx2 s[8:9], s[0:1], 80")
    a("s_waitcnt lgkmcnt(0)")
    srd(a, 12, 4, 8*512*2)
    srd(a, 16, 6, 512*4096*2)
    srd(a, 20, 8, 1 << 30)
    if PROFILE:
        a("s_memrealtime s[34:35]")
    a("v_and_b32 v1, 63, v0")
    a("v_lshrrev_b32 v2, 6, v0")
    a("v_readfirstlane_b32 s24, v2")
    a("v_lshlrev_b32 v3, 4, v1")
    for b in range(8):
        a(f"buffer_load_dwordx4 {vr(8+4*b,4)}, v3, s[12:15], 0 offen offset:{b*1024}" if b < 4 else
          f"buffer_load_dwordx4 {vr(8+4*b,4)}, v4, s[12:15], 0 offen offset:{(b-4)*1024}")
        if b == 0:
            a("v_add_u32 v4, 0x1000, v3")
    a("s_lshl_b32 s25, s2, 5")
    a("s_lshl_b32 s26, s24, 3")
    a("s_add_u32 s25, s25, s26")
    a("v_lshlrev_b32 v5, 16, v1")
    for i in range(8):
        a(f"s_add_u32 s26, s25, {i*8192}")
        a(f"buffer_load_dwordx2 {vr(40+2*i,2)}, v5, s[16:19], s26 offen")
    a("v_mov_b32 v60, -1"); a("v_mov_b32 v61, -1"); a("v_mov_b32 v62, -1"); a("v_mov_b32 v63, -1")
    a("v_lshlrev_b32 v6, 4, v0")
    a(f"s_mul_i32 s27, s2, {NFILL*4096}")
    a(f"s_add_u32 s27, s27, 0x{WS_AREA:x}")
    for i in range(NFILL):
        a(f"buffer_store_dwordx4 v[60:63], v6, s[20:23], s27 offen")
        if i < NFILL-1: a("s_add_u32 s27, s27, 0x1000")
    a(f"s_waitcnt vmcnt({8+NFILL})")
    for b in range(8):
        base = 8 + 4*b
        xs = list(range(64, 72))
        for p in range(4):
            a(f"v_lshlrev_b32 v{xs[2*p]}, 16, v{base+p}")
            a(f"v_and_b32 v{xs[2*p+1]}, 0xffff0000, v{base+p}")
        layernorm(a, xs, [base+p for p in range(4)], 72, 73, 74)
    a(f"s_waitcnt vmcnt({NFILL})")
    a("s_mov_b32 s28, 0x05040100"); a("s_mov_b32 s29, 0x07060302")
    for p in range(4):
        r = 40 + 4*p
        a(f"v_perm_b32 v{76+4*p}, v{r+2}, v{r}, s28")
        a(f"v_perm_b32 v{77+4*p}, v{r+2}, v{r}, s29")
        a(f"v_perm_b32 v{78+4*p}, v{r+3}, v{r+1}, s28")
        a(f"v_perm_b32 v{79+4*p}, v{r+3}, v{r+1}, s29")
    a("v_lshrrev_b32 v5, 4, v1")
    a("v_lshlrev_b32 v5, 1, v5")
    a("v_and_b32 v6, 15, v1")
    a("v_cmp_eq_u32 vcc, 0, v6")
    a("s_mov_b64 s[30:31], vcc")
    for b in range(8):
        base = 8 + 4*b
        acc = [64, 65, 66, 67]
        for c in range(4):
            a(f"v_dot2_f32_bf16 v{acc[c]}, v{76+c}, v{base}, 0")
        for p in range(1, 4):
            for c in range(4):
                a(f"v_dot2_f32_bf16 v{acc[c]}, v{76+4*p+c}, v{base+p}, v{acc[c]}")
        wave_reduce4(a, *acc)
        a(f"v_cvt_pk_bf16_f32 v68, v64, v64")
        a(f"s_add_u32 s26, s25, {WS_Q1 + b*8192}")
        a("s_mov_b64 exec, s[30:31]")
        a(f"buffer_store_short v68, v5, s[20:23], s26 offen")
        a("s_mov_b64 exec, -1")
    if PROFILE:
        a("s_memrealtime s[36:37]")
        a("s_waitcnt lgkmcnt(0)")
        a("v_mov_b32 v8, s34"); a("v_mov_b32 v9, s35"); a("v_mov_b32 v10, s36"); a("v_mov_b32 v11, s37")
        a("s_lshl_b32 s26, s2, 4")
        a(f"s_add_u32 s26, s26, {WS_PROF + 0x140000}")
        a("s_mov_b64 exec, 1")
        a("buffer_store_dwordx4 v[8:11], off, s[20:23], s26")
    a.raw("init_end:")
    a("s_endpgm")
    return a.text() + kd("init_kernel", 96, 40)

KB = 28
VB = 156
NVREG = 25
Q = [2, 3, 4, 5]
ACC = list(range(6, 14))
M, L = 14, 15
S = list(range(16, 24))
PL = [24, 25]; PH = [26, 27]

sG, sC, sH, sJ, sW, sTW, sTEAM, sSTEP, sAREA, sAREA0, sKV, sTO = 20, 21, 22, 23, 24, 25, 26, 27, 28, 29, 30, 31
sT0, sT1, sT2, sT3 = 32, 33, 34, 35
sEX = 36
sEX2 = 38
sHP = 40
sVL = 52
sAREAN = 53
SRD_K, SRD_V, SRD_WS, SRD_X, SRD_OUT, SRD_W, SRD_DBG = 4, 8, 12, 16, 56, 60, 92
sQO, sKV0 = 38, 39
sX, sK, sTGT = 96, 97, 98

def stamp(a, idx, r=22):
    if not PROFILE: return
    a("s_memrealtime s[86:87]")
    a(f"s_lshr_b32 s88, s{sC}, 3")
    a(f"s_lshl_b32 s88, s88, 4")
    a(f"s_lshl_b32 s89, s{sG}, 3")
    a(f"s_or_b32 s88, s88, s89")
    a(f"s_and_b32 s89, s{sC}, 7")
    a(f"s_or_b32 s88, s88, s89")
    a(f"s_lshl_b32 s88, s88, 3")
    a(f"s_add_u32 s88, s88, s{sW}")
    a(f"s_mul_i32 s88, s88, 5")
    a(f"s_add_u32 s88, s88, s{sSTEP}")
    a(f"s_lshl_b32 s88, s88, 7")
    a(f"s_add_u32 s88, s88, {WS_PROF + idx*8}")
    a("s_waitcnt lgkmcnt(0)")
    a("s_mov_b64 s[90:91], exec")
    a("s_mov_b64 exec, 1")
    a(f"v_mov_b32 v{r}, s86")
    a(f"v_mov_b32 v{r+1}, s87")
    a(f"buffer_store_dwordx2 v[{r}:{r+1}], off, s[{SRD_WS}:{SRD_WS+3}], s88")
    a("s_mov_b64 exec, s[90:91]")

def poll(a, loads, regs, tmp):
    lp = a.newlabel("poll"); dn = a.newlabel("polld")
    a.label(lp)
    for l in loads: a(l)
    a("s_waitcnt vmcnt(0)")
    rs = list(regs)
    if len(rs) == 1:
        a(f"v_cmp_eq_u32 vcc, -1, v{rs[0]}")
    else:
        if len(rs) == 2:
            a(f"v_max_u32 v{tmp}, v{rs[0]}, v{rs[1]}"); rs = []
        else:
            a(f"v_max3_u32 v{tmp}, v{rs[0]}, v{rs[1]}, v{rs[2]}"); rs = rs[3:]
        while rs:
            if len(rs) >= 2:
                a(f"v_max3_u32 v{tmp}, v{tmp}, v{rs[0]}, v{rs[1]}"); rs = rs[2:]
            else:
                a(f"v_max_u32 v{tmp}, v{tmp}, v{rs[0]}"); rs = rs[1:]
        a(f"v_cmp_eq_u32 vcc, -1, v{tmp}")
    a(f"s_cbranch_vccz {dn}")
    a(f"s_sleep {SLEEP}")
    a(f"s_sub_u32 s{sTO}, s{sTO}, 1")
    a(f"s_cbranch_scc0 {lp}")
    a("s_branch main_bail")
    a.label(dn)

DEPTH = int(os.environ.get("DEPTH", "64"))
RG = int(os.environ.get("RG", "12"))
KVMOD = os.environ.get("KVMOD", "nt")
SLEEP = int(os.environ.get("SLEEP", "1"))
def issue_group(a, gi):
    ch, sub = gi // 4, gi % 4
    half = sub & 1
    a(f"s_add_u32 s{sT2}, s{sKV}, {(8*ch+4*half)*1024}")
    for i in range(4):
        n = 8*ch + 4*half + i
        if sub < 2:
            a(f"buffer_load_dwordx4 {vr(KB+4*n,4)}, v0, s[{SRD_K}:{SRD_K+3}], s{sT2} offen offset:{i*1024} {KVMOD}")
        elif n < NVREG:
            a(f"buffer_load_dwordx4 {vr(VB+4*n,4)}, v0, s[{SRD_V}:{SRD_V+3}], s{sT2} offen offset:{i*1024} {KVMOD}")
        else:
            a(f"s_add_u32 s{sT3}, s{sVL}, {(n-NVREG)*1024}")
            a(f"s_mov_b32 m0, s{sT3}")
            a(f"s_add_u32 s{sT3}, s{sKV}, {n*1024}")
            a(f"buffer_load_dwordx4 v0, s[{SRD_V}:{SRD_V+3}], s{sT3} offen {KVMOD} lds")

def need_groups(a, st, upto):
    while st[1] < upto:
        st[1] += 1
    a(f"s_waitcnt vmcnt({4*(16-st[1])})")

def attention(a, first, refill=False):
    st = [16, 0]
    for r in ACC: a(f"v_mov_b32 v{r}, 0")
    a(f"v_mov_b32 v{M}, 0xff7fffff")
    a(f"v_mov_b32 v{L}, 0")
    for ch in range(4):
        if first: need_groups(a, st, 4*ch + 2)
        for r in range(4):
            for i in range(8):
                k = KB + 4*(8*ch + i) + r
                if r == 0: a(f"v_dot2_f32_bf16 v{S[i]}, v{k}, v{Q[0]}, 0")
                else: a(f"v_dot2_f32_bf16 v{S[i]}, v{k}, v{Q[r]}, v{S[i]}")
        if refill and 4*ch < RG:
            lr = a.newlabel("norefk")
            a(f"s_cbranch_scc1 {lr}") if False else None
            a(f"s_cmp_eq_u32 s{sSTEP}, 3")
            a(f"s_cbranch_scc1 {lr}")
            issue_group(a, 4*ch); issue_group(a, 4*ch+1)
            a.label(lr)
        for i in range(4):
            a(f"v_add_f32_dpp v{S[i]}, v{S[i]}, v{S[i]} row_mirror row_mask:0xf bank_mask:0x3")
            a(f"v_add_f32_dpp v{S[i]}, v{S[i+4]}, v{S[i+4]} row_mirror row_mask:0xf bank_mask:0xc")
        for i in range(2):
            a(f"v_add_f32_dpp v{S[i]}, v{S[i]}, v{S[i]} row_half_mirror row_mask:0xf bank_mask:0x5")
            a(f"v_add_f32_dpp v{S[i]}, v{S[i+2]}, v{S[i+2]} row_half_mirror row_mask:0xf bank_mask:0xa")
        for e in range(2):
            a(f"v_add_f32_dpp v{S[e]}, v{S[e]}, v{S[e]} quad_perm:[2,3,0,1] {DPP}")
        for e in range(2):
            a(f"v_add_f32_dpp v{S[e]}, v{S[e]}, v{S[e]} quad_perm:[1,0,3,2] {DPP}")
        t0, t1, t2 = S[2], S[3], S[4]
        bfround2(a, S[0], S[1], t0)
        a(f"v_mul_f32 v{S[0]}, 0x{SCALE:x}, v{S[0]}")
        a(f"v_mul_f32 v{S[1]}, 0x{SCALE:x}, v{S[1]}")
        bfround2(a, S[0], S[1], t0)
        a(f"v_max_f32 v{t0}, v{S[0]}, v{S[1]}")
        a(f"v_max_f32_dpp v{t0}, v{t0}, v{t0} row_half_mirror {DPP}")
        a(f"v_max_f32_dpp v{t0}, v{t0}, v{t0} row_mirror {DPP}")
        a(f"v_max_f32 v{t0}, v{t0}, v{M}")
        a(f"v_sub_f32 v{t1}, v{M}, v{t0}")
        a(f"v_sub_f32 v{S[0]}, v{S[0]}, v{t0}")
        a(f"v_sub_f32 v{S[1]}, v{S[1]}, v{t0}")
        a(f"v_mul_f32 v{t1}, 0x{LOG2E:x}, v{t1}")
        a(f"v_mul_f32 v{S[0]}, 0x{LOG2E:x}, v{S[0]}")
        a(f"v_mul_f32 v{S[1]}, 0x{LOG2E:x}, v{S[1]}")
        a(f"v_exp_f32 v{t1}, v{t1}")
        a(f"v_exp_f32 v{S[0]}, v{S[0]}")
        a(f"v_exp_f32 v{S[1]}, v{S[1]}")
        a(f"v_mov_b32 v{M}, v{t0}")
        a(f"v_cvt_pk_bf16_f32 v{PL[0]}, v{S[0]}, 0")
        a(f"v_cvt_pk_bf16_f32 v{PL[1]}, v{S[1]}, 0")
        a(f"v_fma_f32 v{L}, v{L}, v{t1}, v{S[0]}")
        a(f"v_lshlrev_b32 v{PH[0]}, 16, v{PL[0]}")
        a(f"v_lshlrev_b32 v{PH[1]}, 16, v{PL[1]}")
        a(f"v_add_f32 v{L}, v{L}, v{S[1]}")
        for r in ACC: a(f"v_mul_f32 v{r}, v{r}, v{t1}")
        if first: need_groups(a, st, 4*ch + 4)
        for i in range(8):
            vi = 8*ch + i
            e = i & 1
            src = 8*(i >> 2) + 4*((i >> 1) & 1)
            if vi < NVREG:
                vb = VB + 4*vi
            else:
                vb = S[2] + 4*((vi - NVREG) & 0)
                a(f"ds_read_b128 {vr(S[2],4)}, v1 offset:{(vi-NVREG)*1024}")
                a("s_waitcnt lgkmcnt(0)")
            for r in range(4):
                a(f"v_dot2c_f32_bf16_dpp v{ACC[2*r]}, v{PL[e]}, v{vb+r} row_newbcast:{src} {DPP}")
                a(f"v_dot2c_f32_bf16_dpp v{ACC[2*r+1]}, v{PH[e]}, v{vb+r} row_newbcast:{src} {DPP}")
        if refill and 4*ch+2 < RG:
            lr = a.newlabel("norefv")
            a(f"s_cmp_eq_u32 s{sSTEP}, 3")
            a(f"s_cbranch_scc1 {lr}")
            issue_group(a, 4*ch+2); issue_group(a, 4*ch+3)
            a.label(lr)


def lane_id(a, r):
    a(f"v_mbcnt_lo_u32_b32 v{r}, -1, 0")
    a(f"v_mbcnt_hi_u32_b32 v{r}, -1, v{r}")

def epilogue(a, lscr, s_area):
    t0, t1, t2, t3 = S[0], S[1], S[2], S[3]
    a(f"v_mov_b32 v{t0}, v{M}")
    a(f"v_mov_b32 v{t1}, v{M}")
    a(f"v_permlane16_swap_b32 v{t0}, v{t1}")
    a(f"v_max_f32 v{t0}, v{t0}, v{t1}")
    a(f"v_mov_b32 v{t1}, v{t0}")
    a(f"v_permlane32_swap_b32 v{t0}, v{t1}")
    a(f"v_max_f32 v{t0}, v{t0}, v{t1}")
    a(f"v_sub_f32 v{t1}, v{M}, v{t0}")
    a(f"v_mul_f32 v{t1}, 0x{LOG2E:x}, v{t1}")
    a(f"v_exp_f32 v{t1}, v{t1}")
    a(f"v_mul_f32 v{L}, v{L}, v{t1}")
    for r in ACC: a(f"v_mul_f32 v{r}, v{r}, v{t1}")
    a(f"v_add_f32_dpp v{L}, v{L}, v{L} row_half_mirror {DPP}")
    a(f"v_add_f32_dpp v{L}, v{L}, v{L} row_mirror {DPP}")
    for sw in (16, 32):
        a(f"v_mov_b32 v{t1}, v{L}")
        a(f"v_permlane{sw}_swap_b32 v{L}, v{t1}")
        a(f"v_add_f32 v{L}, v{L}, v{t1}")
    for k in range(4):
        a(f"v_permlane32_swap_b32 v{ACC[k]}, v{ACC[k+4]}")
    for k in range(4):
        a(f"v_add_f32 v{ACC[k]}, v{ACC[k]}, v{ACC[k+4]}")
    for k in range(2):
        a(f"v_permlane16_swap_b32 v{ACC[k]}, v{ACC[k+2]}")
    for k in range(2):
        a(f"v_add_f32 v{ACC[k]}, v{ACC[k]}, v{ACC[k+2]}")
    lane_id(a, t2)
    a(f"v_and_b32 v{t3}, 15, v{t2}")
    a(f"v_lshlrev_b32 v{t3}, 5, v{t3}")
    a(f"v_lshrrev_b32 v{t1}, 4, v{t2}")
    a(f"v_lshl_add_u32 v{t3}, v{t1}, 3, v{t3}")
    a(f"s_lshl_b32 s{sT0}, s{sW}, 9")
    a(f"s_add_u32 s{sT0}, s{sT0}, {lscr}")
    a(f"v_add_u32 v{t3}, s{sT0}, v{t3}")
    a(f"ds_write_b64 v{t3}, {vr(ACC[0],2)}")
    a(f"v_mov_b32 v{ACC[2]}, v{t0}")
    a(f"v_mov_b32 v{ACC[3]}, v{L}")
    a(f"s_lshl_b32 s{sT0}, s{sW}, 3")
    a(f"s_add_u32 s{sT0}, s{sT0}, {lscr + 4096}")
    a(f"v_mov_b32 v{t3}, s{sT0}")
    a(f"ds_write_b64 v{t3}, {vr(ACC[2],2)}")
    a("s_waitcnt lgkmcnt(0)")
    a("s_barrier")
    skip = a.newlabel("ep_skip")
    a(f"s_cmp_ge_u32 s{sW}, 2")
    a(f"s_cbranch_scc1 {skip}")
    lane_id(a, 26)
    a(f"s_lshl_b32 s{sT0}, s{sW}, 8")
    a(f"s_add_u32 s{sT0}, s{sT0}, {lscr}")
    a(f"v_lshlrev_b32 v26, 2, v26")
    a(f"v_add_u32 v26, s{sT0}, v26")
    a(f"v_mov_b32 v27, {lscr + 4096}")
    for w in range(8):
        a(f"ds_read_b32 v{2+w}, v26 offset:{w*512}")
    for w in range(4):
        a(f"ds_read_b128 {vr(10+4*w,4)}, v27 offset:{w*16}")
    a("s_waitcnt lgkmcnt(0)")
    a("v_max3_f32 v26, v10, v12, v14")
    a("v_max3_f32 v26, v26, v16, v18")
    a("v_max3_f32 v26, v26, v20, v22")
    a("v_max_f32 v26, v26, v24")
    for w in range(8):
        a(f"v_sub_f32 v{10+2*w}, v{10+2*w}, v26")
    for w in range(8):
        a(f"v_mul_f32 v{10+2*w}, 0x{LOG2E:x}, v{10+2*w}")
    for w in range(8):
        a(f"v_exp_f32 v{10+2*w}, v{10+2*w}")
    a("v_mul_f32 v2, v2, v10")
    a("v_mul_f32 v27, v11, v10")
    for w in range(1, 8):
        a(f"v_fma_f32 v2, v{2+w}, v{10+2*w}, v2")
        a(f"v_fma_f32 v27, v{11+2*w}, v{10+2*w}, v27")
    lane_id(a, 3)
    a("v_lshlrev_b32 v4, 2, v3")
    a(f"s_mul_i32 s{sT0}, s{sC}, {REC_STRIDE}")
    a(f"s_add_u32 s{sT0}, s{sT0}, s{s_area}")
    a(f"s_lshl_b32 s{sT1}, s{sW}, 8")
    a(f"s_add_u32 s{sT1}, s{sT1}, s{sT0}")
    a(f"buffer_store_dword v2, v4, s[{SRD_WS}:{SRD_WS+3}], s{sT1} offen offset:{O_REC}")
    a(f"s_cmp_lg_u32 s{sW}, 0")
    a(f"s_cbranch_scc1 {skip}")
    a("v_cmp_eq_u32 vcc, 0, v3")
    a(f"s_and_saveexec_b64 s[{sEX}:{sEX+1}], vcc")
    a(f"buffer_store_dwordx2 v[26:27], v4, s[{SRD_WS}:{SRD_WS+3}], s{sT0} offen offset:{O_REC+512}")
    a(f"s_mov_b64 exec, -1")
    a.label(skip)

SG_WO, SG_WQ, SG_W12 = 124, 140, 16
def stage_loads(a):
    srd(a, SRD_W, 74, 4096*512*2)
    a("v_lshrrev_b32 v4, 2, v3")
    a("v_lshlrev_b32 v4, 11, v4")
    a("v_and_b32 v5, 3, v3")
    a("v_lshl_add_u32 v4, v5, 4, v4")
    a(f"s_lshl_b32 s{sT0}, s{sX}, 19")
    a(f"s_lshl_b32 s{sT1}, s{sK}, 6")
    a(f"s_add_u32 s{sT0}, s{sT0}, s{sT1}")
    a(f"s_lshl_b32 s{sT1}, s{sW}, 16")
    a(f"s_add_u32 s{sT0}, s{sT0}, s{sT1}")
    for t in range(2):
        for r in range(2):
            a(f"buffer_load_dwordx4 {vr(SG_WO+8*t+4*r,4)}, v4, s[{SRD_W}:{SRD_W+3}], s{sT0} offen offset:{r*1024}")
        if t == 0: a(f"s_add_u32 s{sT0}, s{sT0}, {16*2*1024}")
    srd(a, SRD_W, 72, 512*4096*2)
    a("v_lshrrev_b32 v4, 2, v3")
    a("v_lshlrev_b32 v4, 14, v4")
    a("v_and_b32 v5, 3, v3")
    a("v_lshl_add_u32 v4, v5, 4, v4")
    a(f"s_lshl_b32 s{sT0}, s{sC}, 6")
    a(f"s_lshl_b32 s{sT1}, s{sW}, 19")
    a(f"s_add_u32 s{sT0}, s{sT0}, s{sT1}")
    for t in range(2):
        for r in range(2):
            a(f"buffer_load_dwordx4 {vr(SG_WQ+8*t+4*r,4)}, v4, s[{SRD_W}:{SRD_W+3}], s{sT0} offen")
            if not (t == 1 and r == 1):
                a(f"s_add_u32 s{sT0}, s{sT0}, {8192 if r == 0 else 16*2*8192 - 8192}")
    l_w2 = a.newlabel("ld_w2"); l_wdone = a.newlabel("ld_wdone")
    a(f"s_cmp_eq_u32 s{sTEAM}, 1")
    a(f"s_cbranch_scc1 {l_w2}")
    srd(a, SRD_W, 76, 512*1376*2)
    a(f"s_movk_i32 s{sT1}, {8*2752}")
    a(f"v_mul_lo_u32 v4, s{sT1}, v3")
    a(f"s_mul_i32 s{sT0}, s{sC}, 24")
    a(f"s_mul_i32 s{sT1}, s{sTW}, {2*2752}")
    a(f"s_add_u32 s{sT0}, s{sT0}, s{sT1}")
    for r in range(2):
        for q in range(3):
            a(f"buffer_load_dwordx2 {vr(SG_W12+6*r+2*q,2)}, v4, s[{SRD_W}:{SRD_W+3}], s{sT0} offen offset:{r*2752+q*8}")
    a(f"s_branch {l_wdone}")
    a.label(l_w2)
    srd(a, SRD_W, 78, 1376*512*2)
    a("v_lshlrev_b32 v4, 2, v3")
    a(f"s_mul_i32 s{sT0}, s{sC}, {12*1024}")
    a(f"s_lshl_b32 s{sT1}, s{sTW}, 8")
    a(f"s_add_u32 s{sT0}, s{sT0}, s{sT1}")
    for k in range(12):
        a(f"buffer_load_dword v{SG_W12+k}, v4, s[{SRD_W}:{SRD_W+3}], s{sT0} offen offset:{(k%4)*1024}")
        if k % 4 == 3 and k < 11: a(f"s_add_u32 s{sT0}, s{sT0}, 4096")
    a.label(l_wdone)

def stage_finish(a):
    a("v_lshrrev_b32 v7, 6, v0")
    a("v_and_b32 v8, 3, v7")
    a("v_lshrrev_b32 v7, 2, v7")
    a("v_lshlrev_b32 v7, 4, v7")
    a("v_lshl_add_u32 v7, v8, 13, v7")
    a("v_bfe_u32 v8, v0, 4, 2")
    a("v_lshl_add_u32 v7, v8, 10, v7")
    a(f"s_lshl_b32 s{sT0}, s{sW}, 7")
    a(f"s_add_u32 s{sT0}, s{sT0}, {L_WO}")
    a(f"v_add_u32 v7, s{sT0}, v7")
    for t in range(2):
        ra, rb = SG_WO + 8*t, SG_WO + 8*t + 4
        for half in range(2):
            for z in range(2):
                d = 2*half + z
                a(f"v_perm_b32 v{8+2*z}, v{rb+d}, v{ra+d}, s84")
                a(f"v_perm_b32 v{9+2*z}, v{rb+d}, v{ra+d}, s85")
            a(f"ds_write_b128 v7, v[8:11] offset:{t*64 + half*4096}")
    a("v_lshrrev_b32 v7, 6, v0")
    a("v_and_b32 v8, 3, v7")
    a("v_lshrrev_b32 v7, 2, v7")
    a("v_lshlrev_b32 v7, 4, v7")
    a("v_lshl_add_u32 v7, v8, 13, v7")
    a("v_bfe_u32 v8, v0, 4, 2")
    a("v_lshl_add_u32 v7, v8, 11, v7")
    a(f"s_lshl_b32 s{sT0}, s{sW}, 7")
    a(f"s_add_u32 s{sT0}, s{sT0}, {L_WQ}")
    a(f"v_add_u32 v7, s{sT0}, v7")
    for t in range(2):
        ra, rb = SG_WQ + 8*t, SG_WQ + 8*t + 4
        for half in range(2):
            for z in range(2):
                d = 2*half + z
                a(f"v_perm_b32 v{8+2*z}, v{rb+d}, v{ra+d}, s84")
                a(f"v_perm_b32 v{9+2*z}, v{rb+d}, v{ra+d}, s85")
            a(f"ds_write_b128 v7, v[8:11] offset:{t*64 + half*1024}")
    l_p2 = a.newlabel("pm_w2"); l_pdone = a.newlabel("pm_done"); l_nomask = a.newlabel("nomask")
    a(f"s_cmp_eq_u32 s{sTEAM}, 1")
    a(f"s_cbranch_scc1 {l_p2}")
    a(f"s_cmp_lg_u32 s{sC}, 114")
    a(f"s_cbranch_scc1 {l_nomask}")
    for r in (4, 5, 10, 11): a(f"v_mov_b32 v{SG_W12+r}, 0")
    a.label(l_nomask)
    a(f"s_mul_i32 s{sT0}, s{sTW}, 3072")
    a(f"s_add_u32 s{sT0}, s{sT0}, {L_W1}")
    a(f"v_add_u32 v7, s{sT0}, v0")
    for q in range(3):
        ra, rb = SG_W12 + 2*q, SG_W12 + 6 + 2*q
        a(f"v_perm_b32 v8, v{rb}, v{ra}, s84")
        a(f"v_perm_b32 v9, v{rb}, v{ra}, s85")
        a(f"v_perm_b32 v10, v{rb+1}, v{ra+1}, s84")
        a(f"v_perm_b32 v11, v{rb+1}, v{ra+1}, s85")
        a(f"ds_write_b128 v7, v[8:11] offset:{q*1024}")
    a(f"s_branch {l_pdone}")
    a.label(l_p2)
    a(f"s_lshl_b32 s{sT0}, s{sTW}, 10")
    a(f"s_add_u32 s{sT0}, s{sT0}, {L_W2}")
    a(f"v_add_u32 v7, s{sT0}, v0")
    for n in range(3):
        for z in range(2):
            k = SG_W12 + 4*n + 2*z
            a(f"v_perm_b32 v{8+2*z}, v{k+1}, v{k}, s84")
            a(f"v_perm_b32 v{9+2*z}, v{k+1}, v{k}, s85")
        a(f"ds_write_b128 v7, v[8:11] offset:{n*4096}")
    a.label(l_pdone)
    a("s_waitcnt lgkmcnt(0)")

def load_q1s(a):
    a("v_and_b32 v6, 0xf0, v0")
    a("v_lshrrev_b32 v7, 8, v0")
    a("v_lshl_add_u32 v7, v7, 14, v6")
    a(f"s_lshl_b32 s{sQO}, s{sG}, 13")
    a(f"s_lshl_b32 s{sT2}, s{sH}, 8")
    a(f"s_add_u32 s{sQO}, s{sQO}, s{sT2}")
    a(f"buffer_load_dwordx4 v[8:11], v7, s[{SRD_WS}:{SRD_WS+3}], s{sQO} offen offset:{WS_Q1} sc1")
    a(f"v_add_u32 v7, {L_Q1}, v0")
    a("s_waitcnt vmcnt(0)")
    a("ds_write_b128 v7, v[8:11]")
    a("s_waitcnt lgkmcnt(0)")

def wait_counter(a):
    lp = a.newlabel("wc"); dn = a.newlabel("wcd")
    a("v_mov_b32 v9, 0")
    a.label(lp)
    a(f"buffer_load_dword v8, v9, s[{SRD_DBG}:{SRD_DBG+3}], 0 offen sc1")
    a("s_waitcnt vmcnt(0)")
    a(f"v_cmp_gt_u32 vcc, s{sTGT}, v8")
    a(f"s_cbranch_vccz {dn}")
    a("s_sleep 2")
    a(f"s_sub_u32 s{sTO}, s{sTO}, 1")
    a(f"s_cbranch_scc0 {lp}")
    a("s_branch main_bail")
    a.label(dn)

def gen_main():
    a = Asm()
    a.raw(f".globl {NAME}_kernel\n.p2align 8\n.type {NAME}_kernel,@function\n{NAME}_kernel:")
    a("s_cmp_ge_u32 s2, 256")
    a("s_cbranch_scc1 main_end")
    a("s_load_dwordx4 s[64:67], s[0:1], 8")
    a("s_load_dwordx2 s[68:69], s[0:1], 0")
    a("s_load_dwordx4 s[72:75], s[0:1], 24")
    a("s_load_dwordx4 s[76:79], s[0:1], 48")
    a("s_load_dwordx2 s[80:81], s[0:1], 64")
    a("s_load_dwordx2 s[82:83], s[0:1], 80")
    a("s_load_dwordx2 s[70:71], s[0:1], 72")
    a("v_lshrrev_b32 v2, 6, v0")
    a(f"v_readfirstlane_b32 s{sW}, v2")
    a("v_and_b32 v3, 63, v0")
    a("v_lshlrev_b32 v0, 4, v3")
    a(f"s_and_b32 s{sTW}, s{sW}, 3")
    a(f"s_lshr_b32 s{sTEAM}, s{sW}, 2")
    a(f"s_mul_i32 s{sVL}, s{sW}, 7168")
    a(f"v_add_u32 v1, s{sVL}, v0")
    a(f"s_mov_b32 s{sTO}, 400000")
    a("s_waitcnt lgkmcnt(0)")
    srd(a, SRD_K, 64, 1 << 28)
    srd(a, SRD_V, 66, 1 << 28)
    srd(a, SRD_WS, 82, 1 << 30)
    srd(a, SRD_X, 68, 8192)
    srd(a, SRD_OUT, 80, 8192)
    srd(a, SRD_DBG, 70, 256)
    a(f"s_getreg_b32 s{sX}, hwreg(HW_REG_XCC_ID)")
    a(f"s_and_b32 s{sX}, s{sX}, 7")
    l_nr = a.newlabel("norole")
    a(f"s_cmp_lg_u32 s{sW}, 0")
    a(f"s_cbranch_scc1 {l_nr}")
    a("v_mov_b32 v4, 1")
    a(f"s_lshl_b32 s{sT0}, s{sX}, 2")
    a(f"v_mov_b32 v5, s{sT0}")
    a("s_mov_b64 exec, 1")
    a(f"buffer_atomic_add v4, v5, s[{SRD_DBG}:{SRD_DBG+3}], 0 offen offset:64 sc0 sc1")
    a("s_waitcnt vmcnt(0)")
    a(f"v_mov_b32 v5, {L_ROLE}")
    a("ds_write_b32 v5, v4")
    a("s_waitcnt lgkmcnt(0)")
    a("s_mov_b64 exec, -1")
    a.label(l_nr)
    a("s_barrier")
    a(f"v_mov_b32 v5, {L_ROLE}")
    a("ds_read_b32 v4, v5")
    a("s_waitcnt lgkmcnt(0)")
    a(f"v_readfirstlane_b32 s{sT0}, v4")
    a(f"s_lshr_b32 s{sTGT}, s{sT0}, 5")
    a(f"s_add_u32 s{sTGT}, s{sTGT}, 1")
    a(f"s_lshl_b32 s{sTGT}, s{sTGT}, 7")
    a(f"s_and_b32 s{sT0}, s{sT0}, 31")
    a(f"s_and_b32 s{sG}, s{sT0}, 1")
    a(f"s_lshr_b32 s{sK}, s{sT0}, 1")
    a(f"s_lshl_b32 s{sC}, s{sX}, 4")
    a(f"s_add_u32 s{sC}, s{sC}, s{sK}")
    a(f"s_lshr_b32 s{sH}, s{sC}, 2")
    a(f"s_and_b32 s{sJ}, s{sC}, 3")
    a(f"s_lshl_b32 s{sKV0}, s{sC}, 18")
    a(f"s_lshl_b32 s{sT2}, s{sW}, 15")
    a(f"s_add_u32 s{sKV0}, s{sKV0}, s{sT2}")
    a(f"s_mov_b32 s84, 0x05040100"); a(f"s_mov_b32 s85, 0x07060302")
    a(f"s_mov_b32 s{sSTEP}, 0")
    stamp(a, 13, 26)
    stage_loads(a)
    a("s_barrier")
    l_g0 = a.newlabel("g0skip")
    a(f"s_cmp_eq_u32 s{sG}, 0")
    a(f"s_cbranch_scc1 {l_g0}")
    a("s_waitcnt vmcnt(0)")
    stage_finish(a)
    a(f"s_lshl_b32 s{sT0}, s{sW}, 10")
    a(f"buffer_load_dwordx4 v[10:13], v0, s[{SRD_X}:{SRD_X+3}], s{sT0} offen")
    for r in range(4): a(f"v_mov_b32 v{20+r}, -1")
    a(f"s_lshl_b32 s{sT0}, s{sW}, 10")
    a(f"v_add_u32 v24, s{sT0}, v0")
    a(f"s_mul_i32 s{sT0}, s{sC}, {NFILL*8192}")
    a(f"s_add_u32 s{sT0}, s{sT0}, {WS_AREA}")
    for i in range(NFILL):
        a(f"buffer_store_dwordx4 v[20:23], v24, s[{SRD_WS}:{SRD_WS+3}], s{sT0} offen sc1")
        if i < NFILL-1: a(f"s_add_u32 s{sT0}, s{sT0}, 0x2000")
    a(f"s_waitcnt vmcnt({NFILL})")
    for p in range(4):
        a(f"v_lshlrev_b32 v{2+2*p}, 16, v{10+p}")
        a(f"v_and_b32 v{3+2*p}, 0xffff0000, v{10+p}")
    layernorm(a, list(range(2, 10)), [10, 11, 12, 13], 14, 15, 16)
    a(f"s_lshl_b32 s{sT0}, s{sW}, 10")
    a(f"s_add_u32 s{sT0}, s{sT0}, {L_SC}")
    a(f"v_add_u32 v26, s{sT0}, v0")
    a("ds_write_b128 v26, v[10:13]")
    a("s_waitcnt lgkmcnt(0)")
    a("s_barrier")
    a(f"s_lshl_b32 s{sT0}, s{sW}, 10")
    a(f"s_add_u32 s{sT0}, s{sT0}, {L_WQ}")
    a(f"v_add_u32 v26, s{sT0}, v0")
    for p in range(4):
        a(f"ds_read_b128 {vr(32+4*p,4)}, v26 offset:{p*8192}")
    a(f"v_add_u32 v26, {L_SC}, v0")
    a("v_mov_b32 v25, 0")
    a(f"s_lshl_b32 s{sT2}, s{sC}, 6")
    a(f"s_lshl_b32 s{sT1}, s{sW}, 3")
    a(f"s_add_u32 s{sT2}, s{sT2}, s{sT1}")
    for b in range(8):
        a(f"ds_read_b128 v[10:13], v26 offset:{b*1024}")
        a("s_waitcnt lgkmcnt(0)")
        for p in range(4):
            for c in range(4):
                if p == 0: a(f"v_dot2_f32_bf16 v{2+c}, v{32+c}, v10, 0")
                else: a(f"v_dot2_f32_bf16 v{2+c}, v{32+4*p+c}, v{10+p}, v{2+c}")
        wave_reduce4(a, 2, 3, 4, 5)
        bfround(a, 2, 6)
        for rho in range(4):
            a(f"v_readlane_b32 s{sHP+rho}, v2, {16*rho}")
        a(f"s_pack_hh_b32_b16 s{sHP}, s{sHP}, s{sHP+1}")
        a(f"s_pack_hh_b32_b16 s{sHP+1}, s{sHP+2}, s{sHP+3}")
        a(f"v_mov_b32 v2, s{sHP}")
        a(f"v_mov_b32 v3, s{sHP+1}")
        a(f"s_add_u32 s{sT0}, s{sT2}, {WS_Q1 + b*8192}")
        a("s_mov_b64 exec, 1")
        a(f"buffer_store_dwordx2 v[2:3], v25, s[{SRD_WS}:{SRD_WS+3}], s{sT0} offen sc1")
        a("s_mov_b64 exec, -1")
    a("s_waitcnt vmcnt(0)")
    a("s_barrier")
    l_na = a.newlabel("noatom")
    a(f"s_cmp_lg_u32 s{sW}, 0")
    a(f"s_cbranch_scc1 {l_na}")
    a("v_mov_b32 v2, 1")
    a("s_mov_b64 exec, 1")
    a(f"buffer_atomic_add v2, v25, s[{SRD_DBG}:{SRD_DBG+3}], 0 offen sc1")
    a("s_mov_b64 exec, -1")
    a.label(l_na)
    wait_counter(a)
    load_q1s(a)
    a(f"s_mul_i32 s{sT0}, s{sC}, {REC_STRIDE}")
    a(f"s_add_u32 s{sT0}, s{sT0}, {WS_AREA}")
    a("v_mov_b32 v4, 0")
    poll(a, [f"buffer_load_dword v2, v4, s[{SRD_WS}:{SRD_WS+3}], s{sT0} offen offset:{O_REC+512} sc1"], [2], 3)
    a.label(l_g0)
    a.label("step_loop")
    a(f"s_mul_i32 s{sT0}, s{sG}, 5")
    a(f"s_add_u32 s{sT0}, s{sT0}, s{sSTEP}")
    a(f"s_mul_i32 s{sAREA0}, s{sT0}, {2*AREA}")
    a(f"s_add_u32 s{sAREA0}, s{sAREA0}, {WS_AREA}")
    a(f"s_mul_i32 s{sT1}, s{sTEAM}, {AREA}")
    a(f"s_add_u32 s{sAREA}, s{sAREA0}, s{sT1}")
    a(f"s_add_u32 s{sAREAN}, s{sAREA0}, {3*AREA}")
    stamp(a, 0, 12)
    l_noatt = a.newlabel("noatt1")
    a(f"s_cmp_eq_u32 s{sSTEP}, 4")
    a(f"s_cbranch_scc1 {l_noatt}")
    l_s0 = a.newlabel("notstep0"); l_qd = a.newlabel("qdone")
    a(f"s_cmp_lg_u32 s{sSTEP}, 0")
    a(f"s_cbranch_scc1 {l_s0}")
    a(f"s_lshl_b32 s{sKV}, s{sG}, 25")
    a(f"s_add_u32 s{sKV}, s{sKV}, s{sKV0}")
    for gi in range(12): issue_group(a, gi)
    l_ns = a.newlabel("nostage")
    a(f"s_cmp_lg_u32 s{sG}, 0")
    a(f"s_cbranch_scc1 {l_ns}")
    a("s_waitcnt vmcnt(48)")
    stage_finish(a)
    a.label(l_ns)
    for gi in range(12, 16): issue_group(a, gi)
    a(f"s_cmp_lg_u32 s{sG}, 0")
    a(f"s_cbranch_scc1 {l_qd}")
    wait_counter(a)
    load_q1s(a)
    a(f"s_branch {l_qd}")
    a.label(l_s0)
    for gi in range(RG, 16): issue_group(a, gi)
    a.label(l_qd)
    a(f"s_lshl_b32 s{sT0}, s{sSTEP}, 8")
    a(f"s_add_u32 s{sT0}, s{sT0}, {L_Q1}")
    a("v_and_b32 v6, 0xf0, v0")
    a(f"v_add_u32 v6, s{sT0}, v6")
    a(f"ds_read_b128 {vr(Q[0],4)}, v6")
    a("s_waitcnt lgkmcnt(0)")
    attention(a, True)
    stamp(a, 1)
    epilogue(a, L_EP0, sAREA0)
    stamp(a, 2, 26)
    a.label(l_noatt)
    chain(a)
    a(f"s_cmp_eq_u32 s{sSTEP}, 4")
    a("s_cbranch_scc1 main_end")
    stage_q(a)
    stamp(a, 10)
    a(f"s_add_u32 s{sKV}, s{sKV}, {2 << 25}")
    attention(a, False, True)
    stamp(a, 11)
    epilogue(a, L_EP1, sAREAN)
    stamp(a, 12, 26)
    a(f"s_add_u32 s{sSTEP}, s{sSTEP}, 1")
    a("s_branch step_loop")
    a.raw("main_bail:")
    a.raw("main_end:")
    a("s_endpgm")
    sys.stderr.write(f"main: {len(a.lines)} lines, {a.nnops} nops\n")
    return a.text() + kd(f"{NAME}_kernel", 256, 100)

def red8(a, regs, t):
    for sw in (32, 16):
        for r in regs:
            a(f"v_mov_b32 v{t}, v{r}")
            a(f"v_permlane{sw}_swap_b32 v{r}, v{t}")
            a(f"v_add_f32 v{r}, v{r}, v{t}")
    for r in regs:
        a(f"v_add_f32_dpp v{r}, v{r}, v{r} row_ror:8 {DPP}")

def chain(a):
    ws = f"s[{SRD_WS}:{SRD_WS+3}]"
    sACT, sLEAD = 54, 55
    a(f"s_lshl_b32 s{sT0}, s{sTEAM}, 2")
    a(f"s_sub_u32 s{sT0}, 4, s{sT0}")
    a(f"s_cmp_lg_u32 s{sSTEP}, s{sT0}")
    a(f"s_cselect_b32 s{sACT}, 1, 0")
    a(f"s_cmp_eq_u32 s{sTW}, 0")
    a(f"s_cselect_b32 s{sLEAD}, s{sACT}, 0")
    lane_id(a, 27)
    l1 = a.newlabel("nos1a")
    a(f"s_cmp_eq_u32 s{sACT}, 0")
    a(f"s_cbranch_scc1 {l1}")
    a("v_lshlrev_b32 v26, 3, v27")
    a("v_mov_b32 v25, 0")
    a(f"s_lshl_b32 s{sT0}, s{sX}, 2")
    a(f"s_add_u32 s{sT0}, s{sT0}, s{sTW}")
    a(f"s_mul_i32 s{sT0}, s{sT0}, {4*REC_STRIDE}")
    a(f"s_add_u32 s{sT0}, s{sT0}, s{sAREA}")
    loads = []
    for i in range(4):
        loads.append(f"buffer_load_dwordx2 {vr(2+2*i,2)}, v26, {ws}, s{sT0} offen offset:{O_REC+i*REC_STRIDE} sc1")
        loads.append(f"buffer_load_dwordx2 {vr(10+2*i,2)}, v25, {ws}, s{sT0} offen offset:{O_REC+i*REC_STRIDE+512} sc1")
    poll(a, loads, list(range(2, 18)), 24)
    stamp(a, 3, 20)
    a("v_max3_f32 v24, v10, v12, v14")
    a("v_max_f32 v24, v24, v16")
    for i in range(4): a(f"v_sub_f32 v{10+2*i}, v{10+2*i}, v24")
    for i in range(4): a(f"v_mul_f32 v{10+2*i}, 0x{LOG2E:x}, v{10+2*i}")
    for i in range(4): a(f"v_exp_f32 v{10+2*i}, v{10+2*i}")
    a("v_mul_f32 v24, v11, v10")
    a("v_mul_f32 v2, v2, v10")
    a("v_mul_f32 v3, v3, v10")
    for i in range(1, 4):
        a(f"v_fma_f32 v24, v{11+2*i}, v{10+2*i}, v24")
        a(f"v_fma_f32 v2, v{2+2*i}, v{10+2*i}, v2")
        a(f"v_fma_f32 v3, v{3+2*i}, v{10+2*i}, v3")
    a("v_rcp_f32 v24, v24")
    a("v_mul_f32 v2, v2, v24")
    a("v_mul_f32 v3, v3, v24")
    a("v_cvt_pk_bf16_f32 v2, v2, v3")
    a(f"s_lshl_b32 s{sT0}, s{sW}, 8")
    a(f"s_add_u32 s{sT0}, s{sT0}, {L_OB}")
    a("v_lshlrev_b32 v26, 2, v27")
    a(f"v_add_u32 v26, s{sT0}, v26")
    a("ds_write_b32 v26, v2")
    a("s_waitcnt lgkmcnt(0)")
    a.label(l1)
    a("s_barrier")
    l_na1 = a.newlabel("na1")
    a(f"s_cmp_eq_u32 s{sACT}, 0")
    a(f"s_cbranch_scc1 {l_na1}")
    a(f"s_lshl_b32 s{sT0}, s{sTEAM}, 10")
    a(f"s_add_u32 s{sT0}, s{sT0}, {L_OB}")
    a(f"v_add_u32 v26, s{sT0}, v0")
    a("ds_read_b128 v[2:5], v26")
    a(f"s_lshl_b32 s{sT0}, s{sTW}, 10")
    a(f"s_add_u32 s{sT0}, s{sT0}, {L_WO}")
    a(f"v_add_u32 v26, s{sT0}, v0")
    for p in range(4):
        a(f"ds_read_b128 v[14:17], v26 offset:{(p*2)*4096}")
        a(f"ds_read_b128 v[18:21], v26 offset:{(p*2+1)*4096}")
        a("s_waitcnt lgkmcnt(0)")
        for d in range(8):
            if p == 0: a(f"v_dot2_f32_bf16 v{6+d}, v{14+d}, v2, 0")
            else: a(f"v_dot2_f32_bf16 v{6+d}, v{14+d}, v{2+p}, v{6+d}")
    wave_reduce4(a, 6, 7, 8, 9)
    wave_reduce4(a, 10, 11, 12, 13)
    for u in range(2):
        for rho in range(4):
            a(f"v_readlane_b32 s{sHP+4*u+rho}, v{6+4*u}, {16*rho}")
    for d in range(8): a(f"v_mov_b32 v{14+d}, s{sHP+d}")
    a("v_lshlrev_b32 v26, 10, v0")
    a(f"s_lshl_b32 s{sT0}, s{sK}, 10")
    a(f"s_lshl_b32 s{sT1}, s{sX}, 7")
    a(f"s_add_u32 s{sT0}, s{sT0}, s{sT1}")
    a(f"s_lshl_b32 s{sT1}, s{sTW}, 5")
    a(f"s_add_u32 s{sT0}, s{sT0}, s{sT1}")
    a(f"s_add_u32 s{sT0}, s{sT0}, s{sAREA}")
    a(f"s_add_u32 s{sT0}, s{sT0}, {O_YPF}")
    a("s_mov_b64 exec, 0xff")
    a(f"buffer_store_dwordx4 v[14:17], v26, {ws}, s{sT0} offen sc1")
    a(f"buffer_store_dwordx4 v[18:21], v26, {ws}, s{sT0} offen offset:16 sc1")
    a("s_mov_b64 exec, -1")
    stamp(a, 4)
    a(f"s_cmp_eq_u32 s{sLEAD}, 0")
    a(f"s_cbranch_scc1 {l_na1}")
    l_r1 = a.newlabel("res1"); l_rd = a.newlabel("resd")
    a("v_and_b32 v26, 7, v27")
    a(f"s_cmp_eq_u32 s{sTEAM}, 1")
    a(f"s_cbranch_scc1 {l_r1}")
    a(f"s_lshl_b32 s{sT0}, s{sSTEP}, 1")
    a(f"s_add_u32 s{sT0}, s{sT0}, s{sG}")
    a(f"s_lshl_b32 s{sT0}, s{sT0}, 10")
    a(f"s_lshl_b32 s{sT1}, s{sK}, 6")
    a(f"s_add_u32 s{sT0}, s{sT0}, s{sT1}")
    a("v_lshlrev_b32 v25, 3, v26")
    a(f"buffer_load_dwordx2 v[14:15], v25, s[{SRD_X}:{SRD_X+3}], s{sT0} offen")
    a("s_waitcnt vmcnt(0)")
    a("v_lshlrev_b32 v10, 16, v14")
    a("v_and_b32 v11, 0xffff0000, v14")
    a("v_lshlrev_b32 v12, 16, v15")
    a("v_and_b32 v13, 0xffff0000, v15")
    a(f"s_branch {l_rd}")
    a.label(l_r1)
    a("v_lshlrev_b32 v25, 4, v26")
    a(f"v_add_u32 v25, {L_XRES}, v25")
    a("ds_read_b128 v[10:13], v25")
    a("s_waitcnt lgkmcnt(0)")
    a.label(l_rd)
    a(f"s_lshl_b32 s{sT0}, s{sC}, 10")
    a(f"s_add_u32 s{sT0}, s{sT0}, s{sAREA}")
    a(f"s_add_u32 s{sT0}, s{sT0}, {O_YPF}")
    poll(a, [f"buffer_load_dwordx4 v[4:7], v0, {ws}, s{sT0} offen sc1"], [4, 5, 6, 7], 24)
    red8(a, [4, 5, 6, 7], 8)
    resid_round(a)
    a(f"s_lshl_b32 s{sT0}, s{sTEAM}, 7")
    a(f"s_add_u32 s{sT0}, s{sT0}, {L_X1O}")
    a("v_lshlrev_b32 v25, 4, v26")
    a(f"v_add_u32 v25, s{sT0}, v25")
    a("ds_write_b128 v25, v[10:13]")
    local_pub(a, O_X1L)
    stamp(a, 5)
    a(f"s_cmp_ge_u32 s{sC}, {NZP}")
    a(f"s_cbranch_scc1 {l_na1}")
    xpoll_ln(a, sAREA, O_X1L, 6)
    a(f"s_lshl_b32 s{sT0}, s{sTEAM}, 10")
    a(f"s_add_u32 s{sT0}, s{sT0}, {L_XB}")
    a(f"v_add_u32 v26, s{sT0}, v0")
    a("ds_write_b128 v26, v[18:21]")
    a.label(l_na1)
    a("s_waitcnt lgkmcnt(0)")
    a("s_barrier")
    l_na2 = a.newlabel("na2"); l_zp = a.newlabel("zpub")
    a(f"s_cmp_eq_u32 s{sACT}, 0")
    a(f"s_cbranch_scc1 {l_na2}")
    a("v_mov_b32 v2, 0"); a("v_mov_b32 v3, 0")
    a(f"s_cmp_ge_u32 s{sC}, {NZP}")
    a(f"s_cbranch_scc1 {l_zp}")
    a(f"s_lshl_b32 s{sT0}, s{sTEAM}, 10")
    a(f"s_add_u32 s{sT0}, s{sT0}, {L_XB}")
    a(f"v_add_u32 v26, s{sT0}, v0")
    a("ds_read_b128 v[10:13], v26")
    acc = [2, 3, 4, 5, 6, 7, 8, 9, 14, 15, 16, 17]
    a(f"v_add_u32 v26, {L_W1}, v0")
    for ip in range(4):
        for q in range(3):
            a(f"ds_read_b128 v[22:25], v26 offset:{(3*ip+q)*1024}")
            a("s_waitcnt lgkmcnt(0)")
            for z in range(4):
                if ip == 0: a(f"v_dot2_f32_bf16 v{acc[4*q+z]}, v{22+z}, v{10+ip}, 0")
                else: a(f"v_dot2_f32_bf16 v{acc[4*q+z]}, v{22+z}, v{10+ip}, v{acc[4*q+z]}")
    for q in range(3):
        wave_reduce4(a, *acc[4*q:4*q+4])
    hs = [acc[0], acc[4], acc[8]]
    for q in range(3):
        h = hs[q]
        bfround(a, h, 22)
        a(f"v_mul_f32 v23, 0x{LOG2E ^ 0x80000000:x}, v{h}")
        a("v_exp_f32 v23, v23")
        a("v_add_f32 v23, 1.0, v23")
        a("v_rcp_f32 v23, v23")
        a(f"v_mul_f32 v{h}, v{h}, v23")
        bfround(a, h, 22)
    for q in range(3):
        for rho in range(4):
            a(f"v_readlane_b32 s{sHP+4*q+rho}, v{hs[q]}, {16*rho}")
    for k in range(6):
        a(f"s_pack_hh_b32_b16 s{sHP+k}, s{sHP+2*k}, s{sHP+2*k+1}")
    a(f"s_lshl_b32 s{sT0}, s{sTW}, 10")
    a(f"s_add_u32 s{sT0}, s{sT0}, {L_W2}")
    a(f"v_add_u32 v26, s{sT0}, v0")
    for n in range(3):
        a(f"ds_read_b128 {vr(6+4*n,4)}, v26 offset:{n*4096}")
    a("v_mov_b32 v2, 0"); a("v_mov_b32 v3, 0")
    a("s_waitcnt lgkmcnt(0)")
    for n in range(3):
        for z in range(2):
            a(f"v_dot2c_f32_bf16 v2, s{sHP+2*n+z}, v{6+4*n+2*z}")
            a(f"v_dot2c_f32_bf16 v3, s{sHP+2*n+z}, v{7+4*n+2*z}")
    a.label(l_zp)
    a(f"v_mov_b32_dpp v4, v2 quad_perm:[1,1,3,3] {DPP}")
    a(f"v_mov_b32_dpp v5, v3 quad_perm:[1,1,3,3] {DPP}")
    a("v_lshrrev_b32 v26, 4, v27")
    a("v_lshlrev_b32 v26, 11, v26")
    a("v_bfe_u32 v25, v27, 1, 3")
    a("v_lshl_add_u32 v26, v25, 4, v26")
    a("v_and_b32 v25, 1, v27")
    a(f"s_lshl_b32 s{sT0}, s{sX}, 15")
    a(f"s_lshl_b32 s{sT1}, s{sTW}, 13")
    a(f"s_add_u32 s{sT0}, s{sT0}, s{sT1}")
    a(f"s_lshl_b32 s{sT1}, s{sK}, 7")
    a(f"s_add_u32 s{sT0}, s{sT0}, s{sT1}")
    a(f"s_add_u32 s{sT0}, s{sT0}, s{sAREA}")
    a(f"s_add_u32 s{sT0}, s{sT0}, {O_ZPL}")
    a("v_cmp_eq_u32 vcc, 0, v25")
    a(f"s_and_saveexec_b64 s[{sEX}:{sEX+1}], vcc")
    a(f"buffer_store_dwordx4 v[2:5], v26, {ws}, s{sT0} offen")
    a("s_mov_b64 exec, -1")
    stamp(a, 7)
    a(f"s_cmp_eq_u32 s{sLEAD}, 0")
    a(f"s_cbranch_scc1 {l_na2}")
    a(f"s_lshl_b32 s{sT0}, s{sC}, 11")
    a(f"s_add_u32 s{sT0}, s{sT0}, s{sAREA}")
    a(f"s_add_u32 s{sT0}, s{sT0}, {O_ZPL}")
    poll(a, [f"buffer_load_dwordx4 v[4:7], v0, {ws}, s{sT0} offen sc1",
             f"buffer_load_dwordx4 v[8:11], v0, {ws}, s{sT0} offen offset:1024 sc1"], list(range(4, 12)), 24)
    for r in range(4): a(f"v_add_f32 v{4+r}, v{4+r}, v{8+r}")
    red8(a, [4, 5, 6, 7], 8)
    a("v_lshrrev_b32 v26, 3, v27")
    a("v_lshlrev_b32 v26, 14, v26")
    a("v_and_b32 v25, 7, v27")
    a("v_lshl_add_u32 v26, v25, 4, v26")
    a(f"s_lshl_b32 s{sT0}, s{sK}, 10")
    a(f"s_lshl_b32 s{sT1}, s{sX}, 7")
    a(f"s_add_u32 s{sT0}, s{sT0}, s{sT1}")
    a(f"s_add_u32 s{sT0}, s{sT0}, s{sAREA}")
    a(f"s_add_u32 s{sT0}, s{sT0}, {O_ZPF}")
    a(f"buffer_store_dwordx4 v[4:7], v26, {ws}, s{sT0} offen sc1")
    stamp(a, 14)
    a("v_and_b32 v26, 7, v27")
    a(f"s_lshl_b32 s{sT0}, s{sTEAM}, 7")
    a(f"s_add_u32 s{sT0}, s{sT0}, {L_X1O}")
    a("v_lshlrev_b32 v25, 4, v26")
    a(f"v_add_u32 v25, s{sT0}, v25")
    a("ds_read_b128 v[10:13], v25")
    a(f"s_lshl_b32 s{sT0}, s{sC}, 10")
    a(f"s_add_u32 s{sT0}, s{sT0}, s{sAREA}")
    a(f"s_add_u32 s{sT0}, s{sT0}, {O_ZPF}")
    poll(a, [f"buffer_load_dwordx4 v[4:7], v0, {ws}, s{sT0} offen sc1"], [4, 5, 6, 7], 24)
    a("s_waitcnt lgkmcnt(0)")
    red8(a, [4, 5, 6, 7], 8)
    resid_round(a)
    l_o = a.newlabel("outw")
    a(f"s_cmp_eq_u32 s{sTEAM}, 1")
    a(f"s_cbranch_scc1 {l_o}")
    local_pub(a, O_X2L)
    a("v_lshlrev_b32 v25, 4, v26")
    a(f"v_add_u32 v25, {L_XRES}, v25")
    a("ds_write_b128 v25, v[10:13]")
    a("s_waitcnt lgkmcnt(0)")
    stamp(a, 8)
    a(f"s_branch {l_na2}")
    a.label(l_o)
    a(f"s_cmp_lg_u32 s{sX}, 0")
    a(f"s_cbranch_scc1 {l_na2}")
    a("v_lshlrev_b32 v25, 3, v26")
    a(f"s_lshl_b32 s{sT0}, s{sSTEP}, 1")
    a(f"s_add_u32 s{sT0}, s{sT0}, s{sG}")
    a(f"s_sub_u32 s{sT0}, s{sT0}, 2")
    a(f"s_lshl_b32 s{sT0}, s{sT0}, 10")
    a(f"s_lshl_b32 s{sT1}, s{sK}, 6")
    a(f"s_add_u32 s{sT0}, s{sT0}, s{sT1}")
    a("s_mov_b64 exec, 0xff")
    a(f"buffer_store_dwordx2 v[14:15], v25, s[{SRD_OUT}:{SRD_OUT+3}], s{sT0} offen")
    a("s_mov_b64 exec, -1")
    stamp(a, 8)
    a.label(l_na2)

def resid_round(a):
    bfround2(a, 4, 5, 8)
    bfround2(a, 6, 7, 8)
    for r in range(4): a(f"v_add_f32 v{10+r}, v{10+r}, v{4+r}")
    a("v_cvt_pk_bf16_f32 v14, v10, v11")
    a("v_cvt_pk_bf16_f32 v15, v12, v13")
    a("v_lshlrev_b32 v10, 16, v14")
    a("v_and_b32 v11, 0xffff0000, v14")
    a("v_lshlrev_b32 v12, 16, v15")
    a("v_and_b32 v13, 0xffff0000, v15")

def local_pub(a, off):
    ws = f"s[{SRD_WS}:{SRD_WS+3}]"
    a("v_lshlrev_b32 v24, 3, v26")
    a(f"s_lshl_b32 s{sT0}, s{sX}, 10")
    a(f"s_lshl_b32 s{sT1}, s{sK}, 6")
    a(f"s_add_u32 s{sT0}, s{sT0}, s{sT1}")
    a(f"s_add_u32 s{sT0}, s{sT0}, s{sAREA}")
    a(f"s_add_u32 s{sT0}, s{sT0}, {off}")
    a("s_mov_b64 exec, 0xff")
    a(f"buffer_store_dwordx2 v[14:15], v24, {ws}, s{sT0} offen")
    a("s_mov_b64 exec, -1")

def xpoll_ln(a, s_area, off, stamp_idx):
    ws = f"s[{SRD_WS}:{SRD_WS+3}]"
    a(f"s_lshl_b32 s{sT0}, s{sX}, 10")
    a(f"s_add_u32 s{sT0}, s{sT0}, s{s_area}")
    a(f"s_add_u32 s{sT0}, s{sT0}, {off}")
    poll(a, [f"buffer_load_dwordx4 v[2:5], v0, {ws}, s{sT0} offen sc1"], [2, 3, 4, 5], 24)
    stamp(a, stamp_idx)
    for p in range(4):
        a(f"v_lshlrev_b32 v{10+2*p}, 16, v{2+p}")
        a(f"v_and_b32 v{11+2*p}, 0xffff0000, v{2+p}")
    layernorm(a, list(range(10, 18)), [18, 19, 20, 21], 22, 23, 24)

def stage_q(a):
    ws = f"s[{SRD_WS}:{SRD_WS+3}]"
    l0 = a.newlabel("nos3a")
    a(f"s_cmp_lg_u32 s{sW}, 0")
    a(f"s_cbranch_scc1 {l0}")
    xpoll_ln(a, sAREA0, O_X2L, 9)
    a(f"v_add_u32 v26, {L_XB}, v0")
    a("ds_write_b128 v26, v[18:21]")
    a("s_waitcnt lgkmcnt(0)")
    a.label(l0)
    a("s_barrier")
    a(f"v_add_u32 v26, {L_XB}, v0")
    a("ds_read_b128 v[10:13], v26")
    a(f"s_lshl_b32 s{sT0}, s{sW}, 10")
    a(f"s_add_u32 s{sT0}, s{sT0}, {L_WQ}")
    a(f"v_add_u32 v26, s{sT0}, v0")
    for p in range(2):
        a(f"ds_read_b128 v[14:17], v26 offset:{(2*p)*8192}")
        a(f"ds_read_b128 v[18:21], v26 offset:{(2*p+1)*8192}")
        a("s_waitcnt lgkmcnt(0)")
        for u in range(2):
            for c in range(4):
                if p == 0 and u == 0: a(f"v_dot2_f32_bf16 v{2+c}, v{14+c}, v10, 0")
                else: a(f"v_dot2_f32_bf16 v{2+c}, v{14+4*u+c}, v{10+2*p+u}, v{2+c}")
    wave_reduce4(a, 2, 3, 4, 5)
    bfround(a, 2, 6)
    for rho in range(4):
        a(f"v_readlane_b32 s{sHP+rho}, v2, {16*rho}")
    a(f"s_pack_hh_b32_b16 s{sHP}, s{sHP}, s{sHP+1}")
    a(f"s_pack_hh_b32_b16 s{sHP+1}, s{sHP+2}, s{sHP+3}")
    a(f"v_mov_b32 v2, s{sHP}")
    a(f"v_mov_b32 v3, s{sHP+1}")
    a("v_mov_b32 v4, 0")
    a(f"s_lshl_b32 s{sT0}, s{sC}, 6")
    a(f"s_lshl_b32 s{sT1}, s{sW}, 3")
    a(f"s_add_u32 s{sT0}, s{sT0}, s{sT1}")
    a(f"s_add_u32 s{sT0}, s{sT0}, s{sAREA0}")
    a(f"s_add_u32 s{sT0}, s{sT0}, {O_Q2}")
    a("s_mov_b64 exec, 1")
    a(f"buffer_store_dwordx2 v[2:3], v4, {ws}, s{sT0} offen")
    a("s_mov_b64 exec, -1")
    l1 = a.newlabel("noq2")
    a("v_and_b32 v6, 0xf0, v0")
    a(f"s_cmp_lg_u32 s{sW}, 0")
    a(f"s_cbranch_scc1 {l1}")
    a(f"s_lshl_b32 s{sT0}, s{sH}, 8")
    a(f"s_add_u32 s{sT0}, s{sT0}, s{sAREA0}")
    a(f"s_add_u32 s{sT0}, s{sT0}, {O_Q2}")
    poll(a, [f"buffer_load_dwordx4 {vr(Q[0],4)}, v6, {ws}, s{sT0} offen sc1"], Q, 24)
    a(f"v_add_u32 v7, {L_QB}, v6")
    a(f"ds_write_b128 v7, {vr(Q[0],4)}")
    a("s_waitcnt lgkmcnt(0)")
    a.label(l1)
    a("s_barrier")
    a(f"v_add_u32 v7, {L_QB}, v6")
    a(f"ds_read_b128 {vr(Q[0],4)}, v7")
    a("s_waitcnt lgkmcnt(0)")

if __name__ == "__main__":
    out = header() + gen_main()
    path = sys.argv[1] if len(sys.argv) > 1 else f"cdna_kernels/{NAME}.s"
    open(path, "w").write(out)
```
